```python
import torch

def _softmax(x, axis=-1):
    return torch.softmax(x, dim=axis)

def _gelu(x):
    return torch.nn.functional.gelu(x, approximate='tanh')

def _silu(x):
    return torch.nn.functional.silu(x)

def _sigmoid(x):
    return torch.sigmoid(x)

def _layernorm(x, axis=-1, eps=1e-05):
    m = x.mean(dim=axis, keepdim=True)
    v = x.var(dim=axis, keepdim=True, unbiased=False)
    return (x - m) / torch.sqrt(v + eps)

def _scatter_add(tgt, idx, src, axis=0):
    return tgt.clone().index_add_(axis, idx, src)

def _segment_sum(src, seg, n):
    out = torch.zeros((n,) + src.shape[1:], dtype=src.dtype)
    return out.index_add_(0, seg, src)

def _pad(x, pw):
    flat = tuple((v for pair in reversed(pw) for v in pair))
    return torch.nn.functional.pad(x, flat)
kernel_name = 'adaLN_cond__sliding_block__glu_gated_glu__prompt'

def setup_inputs():

    _w = lambda a: (lambda t: t.to(torch.bfloat16) if t.is_floating_point() else t)(torch.as_tensor(a))

    def _A_setup():
        B, S, D = (1, 2048, 512)
        return {'x': _w((lambda *s: torch.randn(*s, dtype=torch.bfloat16) * 0.05)(B, S, D)), 'wqkv': _w((lambda *s: torch.randn(*s, dtype=torch.bfloat16) * 0.05)(D, 3 * D)), 'wo': _w((lambda *s: torch.randn(*s, dtype=torch.bfloat16) * 0.05)(D, D))}
    _A_in = _A_setup()

    def _B_setup():
        B, S, D, F = (1, 2048, 512, 1792)
        return {'x': _w((lambda *s: torch.randn(*s, dtype=torch.bfloat16) * 0.05)(B, S, D)), 'w_gate': _w((lambda *s: torch.randn(*s, dtype=torch.bfloat16) * 0.05)(D, F)), 'w_up': _w((lambda *s: torch.randn(*s, dtype=torch.bfloat16) * 0.05)(D, F)), 'w_down': _w((lambda *s: torch.randn(*s, dtype=torch.bfloat16) * 0.05)(F, D))}
    _B_in = _B_setup()
    return {'A_x': _A_in['x'], 'A_wqkv': _A_in['wqkv'], 'A_wo': _A_in['wo'], 'B_x': _B_in['x'], 'B_w_gate': _B_in['w_gate'], 'B_w_up': _B_in['w_up'], 'B_w_down': _B_in['w_down'], 'c': _w((lambda *s: torch.randn(*s, dtype=torch.bfloat16) * 0.1)(1, 512) * 8.0), 'w_mod': _w((lambda *s: torch.randn(*s, dtype=torch.bfloat16) * 0.1)(512, 6 * 512) * 512 ** (-0.5) * 8.0)}

def reference(A_x, A_wqkv, A_wo, B_x, B_w_gate, B_w_up, B_w_down, c, w_mod):

    def _A_ref(x, wqkv, wo):
        B, S, D = x.shape
        H = 32
        Dh = D // H
        W = 256
        qkv = (lambda x, *d: x.permute(*d))((x @ wqkv).reshape(B, S, 3, H, Dh), 2, 0, 3, 1, 4)
        q, k, v = (qkv[0], qkv[1], qkv[2])
        scores = torch.einsum('bhqd,bhkd->bhqk', q, k) * Dh ** (-0.5)
        idx = torch.arange(S)
        mask = (idx[:, None] - idx[None, :] >= 0) & (idx[:, None] - idx[None, :] < W)
        scores = torch.where(mask[None, None], scores, -1000000000.0)
        p = _softmax(scores, axis=-1)
        o = torch.einsum('bhqk,bhkd->bhqd', p, v)
        return (lambda x, *d: x.permute(*d))(o, 0, 2, 1, 3).reshape(B, S, D) @ wo

    def _B_ref(x, w_gate, w_up, w_down):
        g = torch.einsum('bsd,df->bsf', x, w_gate)
        u = torch.einsum('bsd,df->bsf', x, w_up)
        h = _sigmoid(g) * u
        return torch.einsum('bsf,fd->bsd', h, w_down)
    x = A_x
    mod = (_silu(c) @ w_mod).reshape(c.shape[0], 6, 1, -1)
    sa, ca, ga, sb, cb, gb = (mod[:, 0].clone(), mod[:, 1].clone(), mod[:, 2].clone(), mod[:, 3].clone(), mod[:, 4].clone(), mod[:, 5].clone())
    h = _layernorm(x, axis=-1) * (1 + ca) + sa
    x = x + ga * _A_ref(h, A_wqkv, A_wo)
    h = _layernorm(x, axis=-1) * (1 + cb) + sb
    x = x + gb * _B_ref(h, B_w_gate, B_w_up, B_w_down)
    return x
```

```python
NAME="adaLN_cond__sliding_block__glu_gated_glu__prompt"
WS_MOD=0; WS_CS=0x4000; WS_ST=0x10000; WS_XN=0x100000; WS_Q=0x300000; WS_K=0x500000; WS_V=0x700000
WS_O=0x900000; WS_X2=0xB00000; WS_Y2=0xD00000; WS_HH=0xF00000; WS_SIZE=0x1700000
ARG=dict(x=0,wqkv=8,wo=16,bx=24,wg=32,wu=40,wd=48,c=56,wm=64,out=72,dbg=80,ws=88)
SIZE=dict(x=2097152,wqkv=1572864,wo=524288,wg=1835008,wu=1835008,wd=1835008,c=1024,wm=3145728,out=2097152,dbg=256,ws=WS_SIZE)
import struct
def f2u(f): return struct.unpack('<I',struct.pack('<f',f))[0]
def vr(a,n=1,p='v'): return f"{p}{a}" if n==1 else f"{p}[{a}:{a+n-1}]"
def sr(a,n=1): return vr(a,n,'s')
class Kern:
    def __init__(s,name,grid,block,lds,vgpr,agpr=0):
        s.name=name; s.grid=grid; s.block=block; s.lds=lds; s.vgpr=vgpr; s.agpr=agpr; s.L=[]
    def e(s,t):
        for ln in t.strip('\n').split('\n'):
            s.L.append('    '+ln.strip() if not ln.strip().endswith(':') else ln.strip())
    def srds(s,lst):
        for nm,r in lst: s.e(f"s_load_dwordx2 {sr(r,2)}, s[0:1], {ARG[nm]}")
        for nm,r in lst:
            s.e(f"s_mov_b32 s{r+2}, {SIZE[nm]}\ns_mov_b32 s{r+3}, 0x00020000")
    def dma(s,vaddr,srd,soff,m0,flags=''):
        s.e(f"s_mov_b32 m0, {m0}\ns_nop 0\nbuffer_load_dwordx4 v{vaddr}, {sr(srd,4)}, {soff} offen {flags} lds")
    def text(s):
        return f".globl {s.name}\n.p2align 8\n.type {s.name},@function\n{s.name}:\n"+"\n".join(s.L)+"\n"
    def desc(s):
        acc=(s.vgpr+3)//4*4
        return f""".p2align 6
.amdhsa_kernel {s.name}
  .amdhsa_next_free_vgpr {acc+s.agpr if s.agpr else s.vgpr}
  .amdhsa_next_free_sgpr 96
  .amdhsa_accum_offset {acc}
  .amdhsa_group_segment_fixed_size 0
  .amdhsa_kernarg_size 96
  .amdhsa_user_sgpr_count 2
  .amdhsa_user_sgpr_kernarg_segment_ptr 1
  .amdhsa_system_sgpr_workgroup_id_x 1
.end_amdhsa_kernel
"""
def build(ks):
    o=["; generated by gen/gen.py : adaLN + sliding-window attention + GLU FFN, hand-scheduled gfx950 kernels"]
    for k in ks: o.append(f"; @launch kernel={k.name} grid=({k.grid},1,1) block=({k.block},1,1) lds={k.lds}")
    o.append('.amdgcn_target "amdgcn-amd-amdhsa--gfx950"\n.text')
    seen=[]
    for k in ks:
        if k.name not in seen: o.append(k.text()); seen.append(k.name)
    o.append('.section .rodata,"a"')
    seen=[]
    for k in ks:
        if k.name not in seen: o.append(k.desc()); seen.append(k.name)
    return "\n".join(o)
def lane_setup(k,vl=1,sw=4):
    k.e(f"v_and_b32 v{vl}, 63, v0\nv_lshrrev_b32 v0, 6, v0\ns_nop 0\nv_readfirstlane_b32 s{sw}, v0")
def unpack(k,dst,src):
    k.e(f"v_lshlrev_b32 v{dst}, 16, v{src}\nv_and_b32 v{dst+1}, 0xffff0000, v{src}")
class Trk:
    def __init__(s,k): s.k=k; s.q={'vm':[], 'lg':[]}; s.done={'vm':0,'lg':0}
    def op(s,c,txt,tag):
        s.k.e(txt); s.q[c].append(tag)
    def log(s,c,tag,n=1): s.q[c]+= [tag]*n
    def wait(s,c,tag,emit=True):
        idx=[i for i,x in enumerate(s.q[c]) if x==tag]
        if not idx: raise Exception(f"no tag {tag}")
        last=idx[-1]+1
        if last<=s.done[c]: return
        n=len(s.q[c])-last
        mx=63 if c=='vm' else 15
        n=min(n,mx)
        s.k.e(f"s_waitcnt {'vmcnt' if c=='vm' else 'lgkmcnt'}({n})")
        s.done[c]=len(s.q[c])-n
```

```python
from common import *
def k0():
    k=Kern("k0_kernel",160,256,36864,112)
    e=k.e
    e("s_cmp_ge_u32 s2, 160\ns_cbranch_scc1 K0_END")
    k.srds([('x',8),('ws',12),('c',16),('wm',20)])
    lane_setup(k,1,4)
    e("s_cmp_ge_u32 s2, 64\ns_cbranch_scc1 K0_MOD")
    e("v_lshlrev_b32 v2, 4, v1")
    e("s_lshl_b32 s5, s4, 3")
    e("s_lshl_b32 s6, s2, 15")
    e("s_lshl_b32 s7, s5, 10\ns_add_u32 s6, s6, s7")
    e("s_and_b32 s24, s5, 15\ns_lshl_b32 s24, s24, 4")
    e("v_xor_b32 v3, s24, v2")
    e("s_waitcnt lgkmcnt(0)")
    for i in range(8):
        e(f"v_xor_b32 v4, {i*16}, v3")
        k.dma(4,8,'s6','s7')
        e("s_add_u32 s6, s6, 1024\ns_add_u32 s7, s7, 1024")
    e("v_and_b32 v5, 31, v1\nv_lshrrev_b32 v6, 5, v1\nv_and_b32 v7, 15, v1\nv_xor_b32 v7, v7, v6\nv_lshlrev_b32 v7, 4, v7")
    e("v_lshl_add_u32 v7, v5, 10, v7\ns_lshl_b32 s24, s4, 8\nv_add_u32 v7, s24, v7")
    e("s_waitcnt vmcnt(0)\ns_barrier")
    for i in range(8):
        e(f"v_xor_b32 v8, {32*i}, v7\nds_read_b128 {vr(12+4*i,4)}, v8")
    e("v_mov_b32 v10, 0\nv_mov_b32 v11, 0")
    for i in range(8):
        e(f"s_waitcnt lgkmcnt({7-i})")
        for j in range(4):
            d=44+8*i+2*j
            unpack(k,d,12+4*i+j)
            e(f"v_add_f32 v10, v10, v{d}\nv_fmac_f32 v11, v{d}, v{d}\nv_add_f32 v10, v10, v{d+1}\nv_fmac_f32 v11, v{d+1}, v{d+1}")
    e("s_lshl_b32 s24, s4, 9\nv_lshlrev_b32 v8, 3, v1\nv_add_u32 v8, s24, v8\nds_write_b64 v8, v[10:11] offset:32768")
    e("v_lshlrev_b32 v8, 3, v5\ns_waitcnt lgkmcnt(0)\ns_barrier")
    for j in range(8): e(f"ds_read_b64 {vr(12+2*j,2)}, v8 offset:{32768+j*256}")
    e("s_waitcnt lgkmcnt(0)")
    for j in range(1,8): e(f"v_add_f32 v12, v12, v{12+2*j}\nv_add_f32 v13, v13, v{13+2*j}")
    e(f"v_mul_f32 v12, {f2u(1/512)}, v12\nv_mul_f32 v13, {f2u(1/512)}, v13\nv_fma_f32 v13, -v12, v12, v13\nv_max_f32 v13, 0, v13")
    e(f"v_add_f32 v13, {f2u(1e-5)}, v13\nv_rsq_f32 v13, v13\ns_nop 0\nv_mul_f32 v12, v12, v13")
    e(f"s_lshl_b32 s6, s2, 15\ns_lshl_b32 s7, s4, 13\ns_add_u32 s6, s6, s7\ns_add_u32 s6, s6, {WS_XN}")
    for i in range(8):
        for j in range(4):
            d=44+8*i+2*j
            e(f"v_fma_f32 v{d}, v{d}, v13, -v12\nv_fma_f32 v{d+1}, v{d+1}, v13, -v12\nv_cvt_pk_bf16_f32 v{16+4*(i&1)+j}, v{d}, v{d+1}")
        e(f"buffer_store_dwordx4 {vr(16+4*(i&1),4)}, v2, s[12:15], s6 offen offset:{(i&3)*1024}")
        if i==3: e("s_add_u32 s6, s6, 4096")
    e("s_endpgm")
    e("K0_MOD:")
    e("s_sub_u32 s5, s2, 64\ns_and_b32 s6, s5, 7\ns_lshl_b32 s6, s6, 1\ns_bfe_u32 s7, s5, 0x10003\ns_add_u32 s6, s6, s7\ns_and_b32 s7, s5, 0x70\ns_add_u32 s5, s6, s7")
    e("v_lshrrev_b32 v2, 2, v1\nv_and_b32 v3, 3, v1")
    e("s_movk_i32 s24, 6144\nv_mul_lo_u32 v4, v2, s24\nv_lshl_add_u32 v4, v3, 4, v4")
    e("s_mul_i32 s6, s4, 786432\ns_lshl_b32 s7, s5, 6\ns_add_u32 s6, s6, s7")
    e("v_lshlrev_b32 v5, 1, v2\ns_lshl_b32 s7, s4, 8")
    e("s_waitcnt lgkmcnt(0)")
    for i in range(8): e(f"buffer_load_ushort v{8+i}, v5, s[16:19], s7 offen offset:{32*i}")
    for i in range(8):
        e(f"buffer_load_dwordx4 {vr(16+4*i,4)}, v4, s[20:23], s6 offen\ns_add_u32 s6, s6, 98304")
    for i in range(8): e(f"v_mov_b32 v{48+i}, 0")
    e("s_waitcnt vmcnt(8)")
    for i in range(8):
        r=8+i
        e(f"v_lshlrev_b32 v{r}, 16, v{r}\nv_mul_f32 v6, {f2u(-1.4426950408889634)}, v{r}\nv_exp_f32 v6, v6\ns_nop 0\nv_add_f32 v6, 1.0, v6\nv_rcp_f32 v6, v6\ns_nop 0\nv_mul_f32 v{r}, v{r}, v6")
        e(f"v_cvt_pk_bf16_f32 v{r}, v{r}, v{r}\nv_lshlrev_b32 v{r}, 16, v{r}")
    for i in range(8):
        e(f"s_waitcnt vmcnt({7-i})")
        for j in range(4):
            unpack(k,6,16+4*i+j)
            e(f"v_fmac_f32 v{48+2*j}, v6, v{8+i}\nv_fmac_f32 v{49+2*j}, v7, v{8+i}")
    e("s_lshl_b32 s7, s4, 11\nv_lshlrev_b32 v6, 7, v2\nv_lshl_add_u32 v6, v3, 5, v6\nv_add_u32 v6, s7, v6")
    e("ds_write_b128 v6, v[48:51]\nds_write_b128 v6, v[52:55] offset:16")
    e("s_waitcnt lgkmcnt(0)\ns_barrier\ns_cmp_lg_u32 s4, 0\ns_cbranch_scc1 K0_END")
    e("v_and_b32 v2, 31, v1\nv_lshrrev_b32 v3, 5, v1\nv_lshlrev_b32 v6, 2, v2\nv_lshl_add_u32 v6, v3, 12, v6")
    for half in range(2):
        for j in range(16): e(f"ds_read_b32 v{16+16*half+j}, v6 offset:{(16*half+j)*128}")
        e("s_waitcnt lgkmcnt(0)")
    for st in (16,8,4,2,1):
        for j in range(st): e(f"v_add_f32 v{16+j}, v{16+j}, v{16+j+st}")
    e("v_mov_b32 v17, v16\ns_nop 1\nv_permlane32_swap_b32 v16, v17\nv_add_f32 v16, v16, v17")
    e("v_cvt_pk_bf16_f32 v16, v16, v16\nv_lshlrev_b32 v16, 16, v16")
    e("s_lshr_b32 s6, s5, 4\ns_cmp_eq_u32 s6, 1\ns_cselect_b32 s7, 1.0, 0\ns_cmp_eq_u32 s6, 4\ns_cselect_b32 s7, 1.0, s7")
    e("v_add_f32 v16, s7, v16\nv_cvt_pk_bf16_f32 v16, v16, v16\nv_lshlrev_b32 v16, 16, v16")
    e(f"s_lshl_b32 s6, s5, 7\nv_lshlrev_b32 v6, 2, v2\nbuffer_store_dword v16, v6, s[12:15], s6 offen")
    e("K0_END:\ns_endpgm")
    return k
```

```python
from common import *
def tile16(k):
    k.e("s_and_b32 s5, s2, 6\ns_lshl_b32 s5, s5, 1\ns_lshr_b32 s6, s2, 6\ns_add_u32 s5, s5, s6")
    k.e("s_and_b32 s6, s2, 1\ns_lshl_b32 s6, s6, 3\ns_bfe_u32 s7, s2, 0x30003\ns_add_u32 s6, s6, s7")
def k1():
    k=Kern("k1_kernel",256,256,98304+4096,232)
    e=k.e
    CO=98304
    e("s_cmp_ge_u32 s2, 256\ns_cbranch_scc1 K1_END")
    k.srds([('wqkv',8),('ws',12)])
    lane_setup(k,1,4)
    tile16(k)
    A=96
    ACC=48
    e("v_lshlrev_b32 v2, 4, v1")
    e("v_lshrrev_b32 v3, 2, v1\nv_and_b32 v4, 3, v1\ns_movk_i32 s24, 3072\nv_mul_lo_u32 v3, v3, s24\nv_lshl_add_u32 v3, v4, 4, v3")
    e("s_lshl_b32 s16, s5, 2\ns_add_u32 s16, s16, s4")
    e(f"s_lshl_b32 s17, s16, 15\ns_add_u32 s17, s17, {WS_XN}")
    e("s_mul_i32 s18, s4, 49152\ns_lshl_b32 s19, s6, 6\ns_add_u32 s18, s18, s19")
    e("s_lshl_b32 s19, s4, 10")
    e(f"s_add_u32 s20, s19, {CO}")
    e("s_waitcnt lgkmcnt(0)")
    k.dma(2,12,'s19','s20')
    for g in range(8):
        for p in range(3):
            e(f"s_add_u32 s21, s18, {p*1024}\ns_add_u32 s20, s19, {p*32768+g*4096}")
            k.dma(3,8,'s21','s20')
        e(f"s_add_u32 s18, s18, {4*49152}")
        for i in range(4):
            e(f"buffer_load_dwordx4 {vr(A+16*g+4*i,4)}, v2, s[12:15], s17 offen offset:{i*1024}")
        e("s_add_u32 s17, s17, 4096")
    e("v_lshrrev_b32 v5, 5, v1\nv_bfe_u32 v6, v1, 2, 2\nv_lshl_add_u32 v6, v5, 3, v6\nv_lshlrev_b32 v6, 6, v6")
    e("v_bfe_u32 v7, v1, 4, 1\nv_lshl_add_u32 v6, v7, 5, v6\nv_and_b32 v7, 3, v1\nv_lshl_add_u32 v6, v7, 3, v6")
    e("v_add_u32 v7, 32768, v6\nv_add_u32 v8, 65536, v6")
    e(f"v_lshlrev_b32 v9, 5, v5\nv_add_u32 v9, {CO}, v9")
    BF=[10,22]; CF=224
    k.vgpr=256
    CF=[224,240]
    T=34
    HF=[36,40]
    def reads(s):
        b=BF[s&1]; c=CF[s&1]
        e(f"ds_read_b128 {vr(c,4)}, v9 offset:{s*64}\nds_read_b128 {vr(c+8,4)}, v9 offset:{2048+s*64}")
        e(f"ds_read_b128 {vr(c+4,4)}, v9 offset:{s*64+16}\nds_read_b128 {vr(c+12,4)}, v9 offset:{2048+s*64+16}")
        for p in range(3):
            e(f"ds_read_b64_tr_b16 {vr(b+4*p,2)}, v{6+p} offset:{s*1024}\nds_read_b64_tr_b16 {vr(b+4*p+2,2)}, v{6+p} offset:{s*1024+256}")
    def modu(s,j):
        c=CF[s&1]; a=A+4*s+j
        unpack(k,T,a)
        e(f"v_fma_f32 v{T}, v{T}, v{c+8+2*j}, v{c+2*j}\nv_fma_f32 v{T+1}, v{T+1}, v{c+9+2*j}, v{c+1+2*j}\nv_cvt_pk_bf16_f32 v{HF[s&1]+j}, v{T}, v{T+1}")
    def mf(s,p):
        b=vr(BF[s&1]+4*p,4); h=vr(HF[s&1],4); d=vr(ACC+16*p,16); c='0' if s==0 else d
        if p<2: e(f"v_mfma_f32_32x32x16_bf16 {d}, {b}, {h}, {c}")
        else: e(f"v_mfma_f32_32x32x16_bf16 {d}, {h}, {b}, {c}")
    e(f"s_waitcnt vmcnt(49)\ns_barrier")
    reads(0)
    e("s_waitcnt lgkmcnt(6)")
    for j in range(4): modu(0,j)
    for s in range(32):
        n=s+1
        if n<32:
            if n%4==0: e(f"s_waitcnt vmcnt({7*(7-n//4)})\ns_barrier")
            reads(n)
            e("s_waitcnt lgkmcnt(10)")
        else:
            e("s_waitcnt lgkmcnt(0)\ns_nop 1")
        mf(s,0)
        if n<32:
            e("s_waitcnt lgkmcnt(8)"); modu(n,0); modu(n,1)
        mf(s,1)
        if n<32:
            e("s_waitcnt lgkmcnt(6)"); modu(n,2)
        mf(s,2)
        if n<32: modu(n,3)
    e("s_lshl_b32 s17, s6, 17\ns_lshl_b32 s18, s16, 10\ns_add_u32 s17, s17, s18")
    e(f"s_add_u32 s19, s17, s18\ns_add_u32 s19, s19, {WS_V}")
    e("s_nop 7")
    for p in range(3):
        for hh in range(2):
            d=10+(2*p+hh)*4
            for j in range(4): e(f"v_cvt_pk_bf16_f32 v{d+j}, v{ACC+16*p+8*hh+2*j}, v{ACC+16*p+8*hh+2*j+1}")
            if p<2:
                e(f"s_add_u32 s20, s17, {(WS_Q,WS_K)[p]+hh*65536}\nbuffer_store_dwordx4 {vr(d,4)}, v2, s[12:15], s20 offen")
            else:
                e(f"buffer_store_dwordx4 {vr(d,4)}, v2, s[12:15], s19 offen offset:{hh*1024}")
    e("K1_END:\ns_endpgm")
    return k
```

```python
from common import *
from k1 import tile16
def k2():
    k=Kern("k2_kernel",256,512,49152+64,224)
    e=k.e
    VB=24576; ONES=49152
    e("s_cmp_ge_u32 s2, 256\ns_cbranch_scc1 K2_END")
    k.srds([('ws',12)])
    lane_setup(k,1,4)
    tile16(k)
    e("v_lshlrev_b32 v2, 4, v1")
    e("s_and_b32 s16, s4, 3\ns_lshr_b32 s17, s4, 2")
    e("s_lshl_b32 s18, s5, 2\ns_add_u32 s19, s18, s16")
    e("s_lshl_b32 s20, s6, 1\ns_add_u32 s20, s20, s17")
    e(f"s_lshl_b32 s21, s20, 16\ns_lshl_b32 s22, s19, 10\ns_add_u32 s22, s22, s21\ns_add_u32 s22, s22, {WS_Q}")
    e("s_waitcnt lgkmcnt(0)")
    e("buffer_load_dwordx4 v[4:7], v2, s[12:15], s22 offen")
    e(f"s_add_u32 s21, s21, {WS_K}\ns_lshl_b32 s23, s6, 17\ns_lshl_b32 s24, s17, 10\ns_add_u32 s23, s23, s24\ns_add_u32 s23, s23, {WS_V}")
    e("s_mul_i32 s25, s17, 12288\ns_lshl_b32 s26, s16, 10\ns_add_u32 s25, s25, s26")
    e(f"s_lshl_b32 s27, s16, 11\ns_add_u32 s27, s27, s24\ns_add_u32 s27, s27, {VB}")
    for j in range(3):
        e(f"s_add_i32 s28, s19, {4*j-8}\ns_max_i32 s28, s28, 0\ns_lshl_b32 s29, s28, 10\ns_add_u32 s30, s29, s21\ns_add_u32 s31, s25, {4096*j}")
        k.dma(2,12,'s30','s31')
    for j in range(3):
        e(f"s_add_i32 s28, s19, {4*j-8}\ns_max_i32 s28, s28, 0\ns_lshl_b32 s29, s28, 11\ns_add_u32 s30, s29, s23\ns_add_u32 s31, s27, {8192*j}")
        k.dma(2,12,'s30','s31')
    e(f"v_mov_b32 v8, 0x3f803f80\nv_mov_b32 v9, v8\nv_mov_b32 v10, v8\nv_mov_b32 v11, v8\nv_mov_b32 v3, {ONES}\nds_write_b128 v3, v[8:11]")
    e("v_add_u32 v3, s25, v2")
    e("v_and_b32 v8, 0x2f, v1\nv_lshlrev_b32 v8, 4, v8\ns_lshl_b32 s28, s17, 8\ns_lshl_b32 s29, s16, 11\ns_add_u32 s28, s28, s29")
    e(f"s_add_u32 s28, s28, {VB}\nv_add_u32 v8, s28, v8\nv_and_b32 v9, 16, v1\nv_cmp_eq_u32 vcc, 0, v9\nv_mov_b32 v10, {ONES}\nv_mov_b32 v11, 1024")
    e("v_cndmask_b32 v12, v10, v8, vcc\nv_cndmask_b32 v13, 0, v11, vcc")
    e("v_and_b32 v8, 31, v1\nv_lshrrev_b32 v9, 5, v1\nv_lshlrev_b32 v9, 2, v9\nv_sub_u32 v14, v8, v9")
    for r in range(16):
        e(f"v_cmp_le_i32 {sr(40+2*r,2)}, {8*(r>>2)+(r&3)}, v14")
    MK=16
    e("v_mov_b32 v8, 0xffff\nv_mov_b32 v9, 0xffff0000")
    for r in range(8):
        e(f"v_cndmask_b32 v10, 0, v8, {sr(40+4*r,2)}\nv_cndmask_b32 v11, 0, v9, {sr(42+4*r,2)}\nv_or_b32 v{MK+r}, v10, v11")
    S=80
    KF=24
    e("s_waitcnt vmcnt(3) lgkmcnt(0)\ns_barrier")
    for t in range(9): e(f"ds_read_b128 {vr(KF+4*t,4)}, v3 offset:{t*1024}")
    e("s_cmp_lt_u32 s19, 8\ns_cbranch_scc1 K2_EDGE")
    order=[0,8,1,2,3,4,5,6,7]
    e("s_waitcnt lgkmcnt(0)")
    for t in order: e(f"v_mfma_f32_32x32x16_bf16 {vr(S+16*t,16)}, {vr(KF+4*t,4)}, v[4:7], 0")
    e("s_branch K2_GO\nK2_EDGE:\ns_waitcnt lgkmcnt(0)")
    e(f"v_mfma_f32_32x32x16_bf16 {vr(S+128,16)}, {vr(KF+32,4)}, v[4:7], 0")
    for t in range(8):
        e(f"s_cmp_lt_u32 s19, {8-t}\ns_cbranch_scc1 K2_F{t}")
        e(f"v_mfma_f32_32x32x16_bf16 {vr(S+16*t,16)}, {vr(KF+4*t,4)}, v[4:7], 0\ns_branch K2_N{t}\nK2_F{t}:")
        for r in range(16): e(f"v_mov_b32 v{S+16*t+r}, {f2u(-1e30)}")
        e(f"K2_N{t}:")
    e("s_nop 7\ns_nop 3\nK2_GO:")
    e("s_waitcnt vmcnt(0)\ns_barrier")
    VF=KF
    for r in range(16): e(f"v_cndmask_b32 v{S+r}, v{S+r}, v{S+128+r}, {sr(40+2*r,2)}")
    vdst=[KF+4*f for f in range(14)]+[S+128+4*f for f in range(4)]
    e("s_nop 1")
    for f in range(18):
        e(f"ds_read_b128 {vr(vdst[f],4)}, v12")
        if f<17: e("v_add_u32 v12, v12, v13")
    e(f"v_max3_f32 v8, v{S}, v{S+1}, v{S+2}\nv_max3_f32 v9, v{S+3}, v{S+4}, v{S+5}")
    r=6
    while r<126:
        e(f"v_max3_f32 v8, v8, v{S+r}, v{S+r+1}\nv_max3_f32 v9, v9, v{S+r+2}, v{S+r+3}"); r+=4
    e(f"v_max3_f32 v8, v8, v{S+126}, v{S+127}\nv_max_f32 v8, v8, v9\nv_mov_b32 v9, v8\ns_nop 1\nv_permlane32_swap_b32 v8, v9\nv_max_f32 v8, v8, v9")
    c=0.25*1.4426950408889634
    e(f"s_mov_b32 s32, {f2u(c)}\nv_mul_f32 v8, s32, v8")
    O=S+16
    k.agpr=16
    first=True
    def pv(f,b):
        nonlocal first
        e(f"v_mfma_f32_32x32x16_bf16 a[0:15], {vr(vdst[f],4)}, {vr(b,4)}, {'0' if first else 'a[0:15]'}"); first=False
    e("s_waitcnt lgkmcnt(0)")
    pend=[]
    for t in [1,2,3,4,5,6,7,0]:
        b=S+16*t
        for hf in range(2):
            for r in range(8*hf,8*hf+8): e(f"v_fma_f32 v{b+r}, v{b+r}, s32, -v8")
            if pend: pv(*pend.pop(0))
            for r in range(8*hf,8*hf+8): e(f"v_exp_f32 v{b+r}, v{b+r}")
            e("s_nop 0")
            for j in range(4): e(f"v_cvt_pk_bf16_f32 v{b+4*hf+j}, v{b+8*hf+2*j}, v{b+8*hf+2*j+1}")
            if t!=0: pend.append((2*t+hf,b+4*hf))
    for j in range(8): e(f"v_and_b32 v{S+8+j}, v{MK+j}, v{S+j}\nv_xor_b32 v{S+j}, v{S+8+j}, v{S+j}")
    e("s_nop 1")
    while pend: pv(*pend.pop(0))
    pv(0,S); pv(1,S+4); pv(16,S+8); pv(17,S+12)
    e(f"s_lshl_b32 s22, s19, 15\ns_lshl_b32 s21, s20, 10\ns_add_u32 s22, s22, s21\ns_add_u32 s22, s22, {WS_O}")
    e("s_nop 7\ns_nop 1\nv_accvgpr_read_b32 v8, a8")
    for r in range(8): e(f"v_accvgpr_read_b32 v{24+r}, a{r}")
    e("v_rcp_f32 v8, v8\ns_nop 0")
    for r in range(8): e(f"v_mul_f32 v{24+r}, v{24+r}, v8")
    for j in range(4): e(f"v_cvt_pk_bf16_f32 v{32+j}, v{24+2*j}, v{25+2*j}")
    e("buffer_store_dwordx4 v[32:35], v2, s[12:15], s22 offen")
    e("K2_END:\ns_endpgm")
    return k
```

```python
from common import *
ACC=16
BFR=80
AFR=96
def tile64(k):
    k.e("s_and_b32 s5, s2, 6\ns_lshl_b32 s5, s5, 2\ns_lshr_b32 s6, s2, 5\ns_add_u32 s5, s5, s6")
    k.e("s_and_b32 s6, s2, 1\ns_lshl_b32 s6, s6, 2\ns_bfe_u32 s7, s2, 0x20003\ns_add_u32 s6, s6, s7")
def ksplit(k,ns,abase,ksteps,depth,slots,pre,npre):
    e=k.e
    region=slots*2048
    e("v_lshrrev_b32 v3, 3, v1\nv_and_b32 v4, 7, v1\nv_and_b32 v5, 16, v1\nv_lshrrev_b32 v5, 2, v5\nv_xor_b32 v4, v4, v5\nv_lshlrev_b32 v4, 4, v4\nv_lshl_add_u32 v3, v3, 10, v4")
    e(f"s_mul_i32 s16, s5, {2*ksteps*1024}\ns_mul_i32 s17, s4, {ns*1024}\ns_add_u32 s16, s16, s17\ns_add_u32 s16, s16, {abase}\ns_add_u32 s17, s16, {ksteps*1024}")
    e(f"s_mul_i32 s18, s4, {ns*16*1024}\ns_lshl_b32 s19, s6, 7\ns_add_u32 s18, s18, s19")
    e(f"s_mul_i32 s19, s4, {region}")
    e("s_waitcnt lgkmcnt(0)")
    def issue(s):
        a=AFR+8*(s%depth)
        for hf in range(2):
            e(f"s_add_u32 s20, s19, {(s%slots)*2048+hf*1024}")
            k.dma(3,8,'s18','s20')
            e("s_add_u32 s18, s18, 8192")
        e(f"buffer_load_dwordx4 {vr(a,4)}, v2, s[12:15], s16 offen offset:{(s&3)*1024}\nbuffer_load_dwordx4 {vr(a+4,4)}, v2, s[12:15], s17 offen offset:{(s&3)*1024}")
        if s&3==3: e("s_add_u32 s16, s16, 4096\ns_add_u32 s17, s17, 4096")
    nfirst=min(depth-1,ns)
    q=[]
    for s in range(nfirst): issue(s); q+= [s]*4
    pre(); q+=['p']*npre
    e("v_lshrrev_b32 v5, 5, v1\nv_bfe_u32 v6, v1, 2, 2\nv_lshl_add_u32 v6, v5, 2, v6\nv_lshlrev_b32 v6, 7, v6")
    e("v_bfe_u32 v7, v1, 3, 1\nv_lshl_add_u32 v6, v7, 6, v6\nv_bfe_u32 v7, v1, 4, 1\nv_lshl_add_u32 v6, v7, 5, v6\nv_and_b32 v7, 3, v1\nv_lshl_add_u32 v6, v7, 3, v6")
    e("v_add_u32 v6, s19, v6\nv_xor_b32 v7, 64, v6")
    def waitfor(s):
        last=max(i for i,x in enumerate(q) if x==s)
        e(f"s_waitcnt vmcnt({len(q)-1-last})")
    def reads(s):
        b=BFR+8*(s&1); o=(s%slots)*2048
        for bb in range(2):
            e(f"ds_read_b64_tr_b16 {vr(b+4*bb,2)}, v{6+bb} offset:{o}\nds_read_b64_tr_b16 {vr(b+4*bb+2,2)}, v{6+bb} offset:{o+1024}")
    waitfor(0); reads(0)
    for s in range(ns):
        if s+1<ns:
            waitfor(s+1); reads(s+1); e("s_waitcnt lgkmcnt(4)")
        else: e("s_waitcnt lgkmcnt(0)")
        a=AFR+8*(s%depth); b=BFR+8*(s&1)
        for t in range(2):
            for bb in range(2):
                d=vr(ACC+16*(2*t+bb),16)
                e(f"v_mfma_f32_32x32x16_bf16 {d}, {vr(b+4*bb,4)}, {vr(a+4*t,4)}, {'0' if s==0 else d}")
            if t==0 and s+nfirst<ns: issue(s+nfirst); q+=[s+nfirst]*4
    e("v_add_u32 v8, s19, v2\ns_nop 7\ns_nop 3")
    for w in range(4):
        e(f"s_cmp_eq_u32 s4, {w}\ns_cbranch_scc1 {k.name}_SK{w}")
        for qd in range(4): e(f"ds_write_b128 v8, {vr(ACC+16*w+4*qd,4)} offset:{w*4096+qd*1024}")
        e(f"s_branch {k.name}_SN{w}\n{k.name}_SK{w}:")
        for r in range(16): e(f"v_mov_b32 v{BFR+r}, v{ACC+16*w+r}")
        e(f"{k.name}_SN{w}:")
    e("s_lshl_b32 s20, s4, 12\nv_add_u32 v8, s20, v2\ns_waitcnt lgkmcnt(0)\ns_barrier")
    for i in range(1,4):
        e(f"s_add_u32 s21, s4, {i}\ns_and_b32 s21, s21, 3\ns_mul_i32 s21, s21, {region}\nv_add_u32 v9, s21, v8")
        for qd in range(4): e(f"ds_read_b128 {vr(ACC+16*i+4*qd,4)}, v9 offset:{qd*1024}")
    for i in range(1,4):
        e(f"s_waitcnt lgkmcnt({4*(3-i)})")
        for r in range(16): e(f"v_add_f32 v{BFR+r}, v{BFR+r}, v{ACC+16*i+r}")
def tilepos(k):
    k.e("s_lshr_b32 s22, s4, 1\ns_lshl_b32 s21, s5, 1\ns_add_u32 s22, s22, s21\ns_and_b32 s23, s4, 1\ns_lshl_b32 s21, s6, 1\ns_add_u32 s23, s23, s21")
    k.e("v_and_b32 v10, 31, v1\nv_lshrrev_b32 v11, 5, v1\nv_lshlrev_b32 v10, 10, v10\nv_lshl_add_u32 v10, v11, 3, v10\nv_lshlrev_b32 v11, 4, v11")
def k3():
    k=Kern("k3_kernel",256+112,256,65536,216)
    e=k.e
    e("s_cmp_ge_u32 s2, 368\ns_cbranch_scc1 K3_END\ns_cmp_ge_u32 s2, 256\ns_cbranch_scc1 K3_CS")
    k.srds([('wo',8),('ws',12),('x',24)])
    lane_setup(k,1,4); tile64(k); e("v_lshlrev_b32 v2, 4, v1"); tilepos(k)
    X=176; GA=184; CB=200
    def pre():
        e("s_lshl_b32 s28, s22, 15\ns_lshl_b32 s29, s23, 6\ns_add_u32 s28, s28, s29\ns_lshl_b32 s29, s23, 7\ns_add_u32 s30, s29, 4096\ns_add_u32 s31, s29, 8192")
        for q in range(4): e(f"buffer_load_dwordx2 {vr(X+2*q,2)}, v10, s[24:27], s28 offen offset:{16*q}")
        for q in range(4): e(f"buffer_load_dwordx4 {vr(GA+4*q,4)}, v11, s[12:15], s30 offen offset:{32*q}")
        for q in range(4): e(f"buffer_load_dwordx4 {vr(CB+4*q,4)}, v11, s[12:15], s31 offen offset:{32*q}")
    ksplit(k,8,WS_O,32,9,8,pre,12)
    e("s_waitcnt vmcnt(0)\nv_mov_b32 v12, 0\nv_mov_b32 v13, 0")
    R=BFR
    for j in range(8):
        unpack(k,14,X+j)
        e(f"v_fma_f32 v14, v{R+2*j}, v{GA+2*j}, v14\nv_fma_f32 v15, v{R+2*j+1}, v{GA+2*j+1}, v15\nv_cvt_pk_bf16_f32 v{16+j}, v14, v15")
        unpack(k,14,16+j)
        e(f"v_add_f32 v12, v12, v14\nv_fmac_f32 v13, v14, v14\nv_add_f32 v12, v12, v15\nv_fmac_f32 v13, v15, v15")
        e(f"v_mul_f32 v14, v14, v{CB+2*j}\nv_mul_f32 v15, v15, v{CB+2*j+1}\nv_cvt_pk_bf16_f32 v{24+j}, v14, v15")
    e(f"s_lshl_b32 s28, s22, 15\ns_lshl_b32 s29, s23, 11\ns_add_u32 s28, s28, s29\ns_add_u32 s29, s28, {WS_Y2}\ns_add_u32 s28, s28, {WS_X2}")
    e("buffer_store_dwordx4 v[24:27], v2, s[12:15], s29 offen\nbuffer_store_dwordx4 v[28:31], v2, s[12:15], s29 offen offset:1024")
    e("buffer_store_dwordx4 v[16:19], v2, s[12:15], s28 offen\nbuffer_store_dwordx4 v[20:23], v2, s[12:15], s28 offen offset:1024")
    e(f"s_lshl_b32 s28, s22, 13\ns_lshl_b32 s29, s23, 9\ns_add_u32 s28, s28, s29\ns_add_u32 s28, s28, {WS_ST}\nv_lshlrev_b32 v3, 3, v1")
    e("buffer_store_dwordx2 v[12:13], v3, s[12:15], s28 offen\ns_endpgm")
    e("K3_CS:")
    e("s_sub_u32 s5, s2, 256\ns_and_b32 s6, s5, 7\ns_lshl_b32 s6, s6, 1\ns_bfe_u32 s7, s5, 0x10003\ns_add_u32 s6, s6, s7\ns_and_b32 s7, s5, 0x70\ns_add_u32 s5, s6, s7")
    e(f"s_cmp_ge_u32 s5, 56\ns_cselect_b32 s28, 8, 0\ns_cselect_b32 s29, 56, 0\ns_cselect_b32 s30, 1024, 0\ns_sub_u32 s5, s5, s29\ns_add_u32 s6, s0, s28\ns_addc_u32 s7, s1, 0")
    e(f"s_load_dwordx2 s[8:9], s[6:7], {ARG['wg']}\ns_mov_b32 s10, {SIZE['wg']}\ns_mov_b32 s11, 0x00020000")
    k.srds([('ws',12)])
    lane_setup(k,1,4)
    e("v_lshrrev_b32 v2, 2, v1\nv_and_b32 v3, 3, v1\ns_movk_i32 s24, 3584\nv_mul_lo_u32 v4, v2, s24\nv_lshl_add_u32 v4, v3, 4, v4")
    e(f"s_mul_i32 s6, s4, {128*3584}\ns_lshl_b32 s7, s5, 6\ns_add_u32 s6, s6, s7\nv_lshlrev_b32 v5, 2, v2\ns_lshl_b32 s7, s4, 9\ns_add_u32 s7, s7, {1536*4}")
    e("s_waitcnt lgkmcnt(0)")
    for i in range(8):
        e(f"buffer_load_dwordx4 {vr(32+4*i,4)}, v4, s[8:11], s6 offen\ns_add_u32 s6, s6, {16*3584}")
    for i in range(8): e(f"buffer_load_dword v{8+i}, v5, s[12:15], s7 offen offset:{64*i}\nbuffer_load_dword v{16+i}, v5, s[12:15], s7 offen offset:{2048+64*i}")
    for i in range(16): e(f"v_mov_b32 v{64+i}, 0")
    e("s_waitcnt vmcnt(0)")
    for i in range(8):
        for j in range(4):
            unpack(k,6,32+4*i+j)
            e(f"v_fmac_f32 v{64+2*j}, v6, v{16+i}\nv_fmac_f32 v{65+2*j}, v7, v{16+i}\nv_fmac_f32 v{72+2*j}, v6, v{8+i}\nv_fmac_f32 v{73+2*j}, v7, v{8+i}")
    e("s_lshl_b32 s7, s4, 11\nv_lshlrev_b32 v6, 7, v2\nv_lshl_add_u32 v6, v3, 5, v6\nv_add_u32 v6, s7, v6")
    e("ds_write_b128 v6, v[64:67]\nds_write_b128 v6, v[68:71] offset:16\nds_write_b128 v6, v[72:75] offset:8192\nds_write_b128 v6, v[76:79] offset:8208")
    e("s_waitcnt lgkmcnt(0)\ns_barrier\ns_cmp_ge_u32 s4, 2\ns_cbranch_scc1 K3_END")
    e("v_and_b32 v2, 31, v1\nv_lshrrev_b32 v3, 5, v1\nv_lshlrev_b32 v6, 2, v2\nv_lshl_add_u32 v6, v3, 12, v6\ns_lshl_b32 s7, s4, 13\nv_add_u32 v6, s7, v6")
    for half in range(2):
        for j in range(16): e(f"ds_read_b32 v{16+16*half+j}, v6 offset:{(16*half+j)*128}")
        e("s_waitcnt lgkmcnt(0)")
    for st in (16,8,4,2,1):
        for j in range(st): e(f"v_add_f32 v{16+j}, v{16+j}, v{16+j+st}")
    e("v_mov_b32 v17, v16\ns_nop 1\nv_permlane32_swap_b32 v16, v17\nv_add_f32 v16, v16, v17")
    e("s_lshl_b32 s6, s5, 5\nv_add_u32 v2, s6, v2\nv_mul_u32_u24 v3, 9363, v2\nv_lshrrev_b32 v3, 20, v3\nv_mul_u32_u24 v4, 400, v3\nv_add_u32 v2, v2, v4\nv_lshlrev_b32 v2, 2, v2")
    e(f"s_lshl_b32 s7, s4, 9\ns_add_u32 s7, s7, s30\ns_add_u32 s7, s7, {WS_CS}\nbuffer_store_dword v16, v2, s[12:15], s7 offen")
    e("K3_END:\ns_endpgm")
    return k
def k5():
    k=Kern("k5_kernel",256,256,131072,240)
    e=k.e
    e("s_cmp_ge_u32 s2, 256\ns_cbranch_scc1 K5_END")
    k.srds([('wd',8),('ws',12),('out',24)])
    lane_setup(k,1,4); tile64(k); e("v_lshlrev_b32 v2, 4, v1"); tilepos(k)
    X=216; GB=224
    def pre():
        e(f"s_lshl_b32 s28, s22, 15\ns_lshl_b32 s29, s23, 11\ns_add_u32 s28, s28, s29\ns_add_u32 s28, s28, {WS_X2}\ns_lshl_b32 s29, s23, 7\ns_add_u32 s30, s29, 10240")
        for q in range(2): e(f"buffer_load_dwordx4 {vr(X+4*q,4)}, v2, s[12:15], s28 offen offset:{1024*q}")
        for q in range(4): e(f"buffer_load_dwordx4 {vr(GB+4*q,4)}, v11, s[12:15], s30 offen offset:{32*q}")
    ksplit(k,28,WS_HH,112,15,16,pre,6)
    R=BFR
    for j in range(8):
        unpack(k,14,X+j)
        e(f"v_fma_f32 v14, v{R+2*j}, v{GB+2*j}, v14\nv_fma_f32 v15, v{R+2*j+1}, v{GB+2*j+1}, v15\nv_cvt_pk_bf16_f32 v{16+j}, v14, v15")
    e("v_lshrrev_b32 v11, 1, v11\nv_add_u32 v10, v10, v11\ns_lshl_b32 s28, s22, 15\ns_lshl_b32 s29, s23, 6\ns_add_u32 s28, s28, s29")
    e("v_permlane32_swap_b32 v16, v18\nv_permlane32_swap_b32 v17, v19\nv_permlane32_swap_b32 v20, v22\nv_permlane32_swap_b32 v21, v23")
    e("buffer_store_dwordx4 v[16:19], v10, s[24:27], s28 offen\nbuffer_store_dwordx4 v[20:23], v10, s[24:27], s28 offen offset:32")
    e("K5_END:\ns_endpgm")
    return k
```

```python
from common import *
from k1 import tile16
def k4():
    k=Kern("k4_kernel",256,256,157952,240,128)
    e=k.e; T=Trk(k)
    CSL=155904
    slot=lambda j: (131072+j*12416) if j<2 else (j-2)*16384
    ACC=128
    BF=[32,48]
    STT=64
    e("s_cmp_ge_u32 s2, 256\ns_cbranch_scc1 K4_END")
    k.srds([('wg',8),('ws',12)])
    e(f"s_load_dwordx2 s[24:25], s[0:1], {ARG['wu']}")
    lane_setup(k,1,4); tile16(k)
    e("v_lshlrev_b32 v2, 4, v1\ns_lshr_b32 s26, s4, 1\ns_and_b32 s27, s4, 1")
    e("s_movk_i32 s28, 3584\nv_lshrrev_b32 v3, 3, v1\nv_mul_lo_u32 v3, v3, s28\nv_and_b32 v4, 7, v1\nv_lshlrev_b32 v4, 4, v4\nv_and_b32 v5, 16, v1\nv_lshlrev_b32 v5, 2, v5\nv_xor_b32 v4, v4, v5")
    e("s_lshl_b32 s29, s26, 5\nv_xor_b32 v4, s29, v4\nv_add_u32 v3, v3, v4")
    e("s_lshl_b32 s16, s5, 2\ns_add_u32 s16, s16, s4")
    e(f"s_lshl_b32 s17, s16, 15\ns_add_u32 s17, s17, {WS_Y2}")
    e(f"s_mul_i32 s18, s27, {8*3584}\ns_mul_i32 s19, s6, 224\ns_add_u32 s18, s18, s19")
    e(f"s_mul_i32 s30, s27, {32*3584}\ns_add_u32 s30, s30, s19\ns_add_u32 s30, s30, 128")
    e("s_lshl_b32 s19, s26, 13\ns_lshl_b32 s20, s27, 10\ns_add_u32 s19, s19, s20")
    e("s_mul_i32 s31, s26, 6272\ns_mul_i32 s20, s27, 3072\ns_add_u32 s31, s31, s20")
    e("s_waitcnt lgkmcnt(0)\ns_cmp_eq_u32 s26, 1\ns_cselect_b32 s8, s24, s8\ns_cselect_b32 s9, s25, s9")
    def st1(g):
        L=[]
        for i in range(4):
            L.append((f"s_add_u32 m0, s19, {g*16384+i*2048}\ns_nop 0\nbuffer_load_dwordx4 v3, s[8:11], s18 offen lds\ns_add_u32 s18, s18, {16*3584}",'vm',('s1',g)))
            L.append((f"buffer_load_dwordx4 {vr(16*g+4*i,4,'a')}, v2, s[12:15], s17 offen offset:{i*1024}"+("\ns_add_u32 s17, s17, 4096" if i==3 else ""),'vm',('s1',g)))
        return L
    def st2(j):
        return [(f"s_add_u32 m0, s31, {slot(j)+i*1024}\ns_nop 0\nbuffer_load_dwordx4 v{12+i}, s[8:11], s30 offen lds"+(f"\ns_add_u32 s30, s30, {64*3584}" if i==2 else ""),'vm',('s2',j)) for i in range(3)]
    def run(it):
        if isinstance(it,str): e(it)
        elif it[1]=='w': T.wait(it[0],it[2])
        else: T.op(it[1],it[0],it[2])
    for g in range(2):
        for it in st1(g): run(it)
    e(f"s_lshl_b32 s20, s6, 11\ns_lshl_b32 s21, s27, 10\ns_add_u32 s20, s20, s21\ns_add_u32 s20, s20, {WS_CS}\ns_add_u32 m0, s21, {CSL}")
    e(f"s_lshl_b32 s21, s16, 13\ns_add_u32 s21, s21, {WS_ST}\ns_add_u32 s22, s21, 4096\nv_lshlrev_b32 v4, 3, v1")
    T.op('vm',"buffer_load_dwordx4 v2, s[12:15], s20 offen lds",'cs')
    for i in range(16): T.op('vm',f"buffer_load_dwordx2 {vr(STT+2*i,2)}, v4, s[12:15], s{21+i//8} offen offset:{(i&7)*512}",'st')
    for g in range(2,5):
        for it in st1(g): run(it)
    for i in range(3):
        e(f"v_add_u32 v4, {64*i}, v1\nv_mul_u32_u24 v5, 171, v4\nv_lshrrev_b32 v5, 10, v5\nv_mul_u32_u24 v6, 6, v5\nv_sub_u32 v4, v4, v6\nv_mul_lo_u32 v5, v5, s28\nv_lshl_add_u32 v{12+i}, v4, 4, v5")
    e("v_lshrrev_b32 v4, 5, v1\nv_bfe_u32 v5, v1, 2, 2\nv_bfe_u32 v6, v1, 4, 1\nv_and_b32 v7, 3, v1\nv_lshl_add_u32 v5, v4, 2, v5")
    e("v_lshlrev_b32 v8, 7, v5\nv_lshl_add_u32 v8, v6, 13, v8\nv_lshl_add_u32 v8, v7, 3, v8\nv_lshl_add_u32 v8, v6, 5, v8\nv_bfe_u32 v9, v1, 3, 1\nv_lshl_add_u32 v8, v9, 6, v8")
    e("v_xor_b32 v9, 32, v8\nv_xor_b32 v10, 64, v8\nv_xor_b32 v11, 96, v8")
    e("v_mul_u32_u24 v15, 96, v5\nv_mul_u32_u24 v6, 6272, v6\nv_add_u32 v15, v15, v6\nv_lshl_add_u32 v15, v7, 3, v15")
    e(f"v_lshlrev_b32 v17, 4, v4\nv_add_u32 v17, {CSL}, v17")
    e(f"s_mul_i32 s33, s16, {112*1024}\ns_mul_i32 s34, s6, 7168\ns_add_u32 s33, s33, s34\ns_add_u32 s33, s33, {WS_HH}\ns_add_u32 s34, s33, 4096")
    MU,SG,AA=18,19,20
    stats=[('vm','w','st')]
    for i in range(1,16): stats+=[f"v_add_f32 v{STT}, v{STT}, v{STT+2*i}",f"v_add_f32 v{STT+1}, v{STT+1}, v{STT+2*i+1}"]
    stats+=[f"v_mov_b32 v{STT+2}, v{STT}",f"v_mov_b32 v{STT+3}, v{STT+1}","s_nop 1",f"v_permlane32_swap_b32 v{STT}, v{STT+2}",f"v_permlane32_swap_b32 v{STT+1}, v{STT+3}",
        f"v_add_f32 v{STT}, v{STT}, v{STT+2}",f"v_add_f32 v{STT+1}, v{STT+1}, v{STT+3}",
        f"v_mul_f32 v{MU}, {f2u(1/512)}, v{STT}",f"v_mul_f32 v{STT+1}, {f2u(1/512)}, v{STT+1}",f"v_fma_f32 v{STT+1}, -v{MU}, v{MU}, v{STT+1}",f"v_max_f32 v{STT+1}, 0, v{STT+1}",
        f"v_add_f32 v{STT+1}, {f2u(1e-5)}, v{STT+1}",f"v_rsq_f32 v{AA}, v{STT+1}","s_nop 0",f"v_mul_f32 v{SG}, v{AA}, v{STT+1}",f"v_mul_f32 v{AA}, {f2u(-1.4426950408889634)}, v{AA}"]
    def coef(b):
        return [(f"ds_read_b128 {vr(64+8*a+4*q,4)}, v17 offset:{a*512+b*64+q*32}",'lg',('co',b)) for a in range(4) for q in range(2)]+[('lg','w',('co',b))]
    def init(b):
        L=coef(b)
        for m in range(2):
            for r in range(8):
                d=ACC+16*b+8*m+r
                L+=[f"v_mul_f32 v{d}, v{72+16*m+r}, v{SG}",f"v_fma_f32 v{d}, -v{MU}, v{64+16*m+r}, v{d}"]
        return L
    def epi(b,corr):
        L=[]; D=ACC+16*b
        if corr:
            L=coef(b)
            for m in range(2):
                for r in range(8):
                    d=D+8*m+r
                    L+=[f"v_fma_f32 v{d}, v{72+16*m+r}, v{SG}, v{d}",f"v_fma_f32 v{d}, -v{MU}, v{64+16*m+r}, v{d}"]
        L+=[f"v_mul_f32 v{D+r}, v{D+r}, v{AA}" for r in range(8)]
        L+=[f"v_exp_f32 v{D+r}, v{D+r}" for r in range(8)]
        L+=[f"v_fma_f32 v{D+r}, v{D+r}, v{SG}, v{SG}" for r in range(8)]
        L+=[f"v_rcp_f32 v{D+r}, v{D+r}" for r in range(8)]
        L+=[f"v_mul_f32 v{D+r}, v{D+r}, v{D+8+r}" for r in range(8)]
        L+=[f"v_cvt_pk_bf16_f32 v{D+8+j}, v{D+2*j}, v{D+2*j+1}" for j in range(4)]
        L+=[(f"buffer_store_dwordx4 {vr(D+8,4)}, v2, s[12:15], s{33+b//4} offen offset:{(b&3)*1024}",'vm','o')]
        return L
    cost=lambda it: (8 if isinstance(it,str) and (it.startswith('v_exp') or it.startswith('v_rcp')) else 4) if isinstance(it,str) or it[1]!='vm' else 16
    def reads(p,s):
        L=[]; b0=BF[s&1]
        if p==0:
            if s==16: L+=[f"v_add_u32 v{8+b}, 65536, v{8+b}" for b in range(4)]
            o=((s>>2)*16384+(s&3)*2048)&65535
            for b in range(4):
                for x in range(2): L.append((f"ds_read_b64_tr_b16 {vr(b0+4*b+2*x,2)}, v{8+b} offset:{o+x*1024}",'lg',('b',p,s,b)))
        else:
            if s&3==0: L.append(f"v_add_u32 v16, {slot(s>>2)}, v15")
            for b in range(3):
                for x in range(2): L.append((f"ds_read_b64_tr_b16 {vr(b0+4*b+2*x,2)}, v16 offset:{(s&3)*1536+b*32+x*768}",'lg',('b',p,s,b)))
        return L
    T.wait('vm',('s1',0)); e("s_barrier")
    for it in reads(0,0): run(it)
    steps=[(0,s) for s in range(32)]+[(1,s) for s in range(32)]
    fill=[]
    for idx,(p,s) in enumerate(steps):
        nb=4 if p==0 else 3
        if p==0 and s&3==0:
            g=s>>2
            if g==0: fill+=st1(5)
            if g==1: fill+=st1(6)+st2(0)
            if g==2: fill+=st1(7)+st2(1)+st2(2)+stats
            if g>=3: fill=st2(g)+fill
            if g==3: fill+=init(4)+init(5)+init(6)
        if p==1 and s==0:
            for it in fill: run(it)
            e("s_nop 1")
            fill=[]
        if p==1 and s==1: fill+=epi(0,1)+epi(1,1)+epi(2,1)+epi(3,1)
        rd=[]
        if idx+1<64:
            p2,s2=steps[idx+1]
            if s2&3==0:
                T.wait('vm',('s1',s2>>2) if p2==0 else ('s2',s2>>2)); e("s_barrier")
            rd=reads(p2,s2)
        for b in range(nb):
            T.wait('lg',('b',p,s,b))
            d=vr(ACC+16*(b+4*p),16)
            e(f"v_mfma_f32_32x32x16_bf16 {d}, {vr(BF[s&1]+4*b,4)}, {vr(4*s,4,'a')}, {'0' if (s==0 and p==0) else d}")
            bud=24
            n=0
            while rd and (n<2 or b==nb-1 or isinstance(rd[0],str)):
                it=rd.pop(0); run(it); bud-=4; n+=0 if isinstance(it,str) else 1
            while fill and bud>=cost(fill[0])-4:
                it=fill.pop(0); run(it); bud-=cost(it)
    for it in fill: run(it)
    e("s_nop 7\ns_nop 3")
    for b in range(4,7):
        for it in epi(b,0): run(it)
    e("K4_END:\ns_endpgm")
    return k
```

```python
import sys
from common import *
from k0 import k0
from k1 import k1
from k2 import k2
from k35 import k3,k5
from k4 import k4
em=Kern("em_kernel",256,256,0,8); em.e("s_endpgm")
ks=[k0(),k1(),k2(),k3(),k4(),k5()]
open("v_pre6.s","w").write(build([em]*6+ks))
open("v_dup.s","w").write(build(ks+ks))
```

```python
NAME="adaLN_cond__sliding_block__glu_gated_glu__prompt"
WS_MOD=0; WS_CS=0x4000; WS_ST=0x10000; WS_XN=0x100000; WS_Q=0x300000; WS_K=0x500000; WS_V=0x700000
WS_O=0x900000; WS_X2=0xB00000; WS_Y2=0xD00000; WS_HH=0xF00000; WS_WQ=0x1700000; WS_WO=0x1880000; WS_WGU=0x1900000; WS_WD=0x1C80000; WS_SIZE=0x1E40000
ARG=dict(x=0,wqkv=8,wo=16,bx=24,wg=32,wu=40,wd=48,c=56,wm=64,out=72,dbg=80,ws=88)
SIZE=dict(x=2097152,wqkv=1572864,wo=524288,wg=1835008,wu=1835008,wd=1835008,c=1024,wm=3145728,out=2097152,dbg=256,ws=WS_SIZE)
import struct
def f2u(f): return struct.unpack('<I',struct.pack('<f',f))[0]
def vr(a,n=1,p='v'): return f"{p}{a}" if n==1 else f"{p}[{a}:{a+n-1}]"
def sr(a,n=1): return vr(a,n,'s')
class Kern:
    def __init__(s,name,grid,block,lds,vgpr,agpr=0):
        s.name=name; s.grid=grid; s.block=block; s.lds=lds; s.vgpr=vgpr; s.agpr=agpr; s.L=[]
    def e(s,t):
        for ln in t.strip('\n').split('\n'):
            s.L.append('    '+ln.strip() if not ln.strip().endswith(':') else ln.strip())
    def srds(s,lst):
        for nm,r in lst: s.e(f"s_load_dwordx2 {sr(r,2)}, s[0:1], {ARG[nm]}")
        for nm,r in lst:
            s.e(f"s_mov_b32 s{r+2}, {SIZE[nm]}\ns_mov_b32 s{r+3}, 0x00020000")
    def dma(s,vaddr,srd,soff,m0,flags=''):
        s.e(f"s_mov_b32 m0, {m0}\ns_nop 0\nbuffer_load_dwordx4 v{vaddr}, {sr(srd,4)}, {soff} offen {flags} lds")
    def text(s):
        return f".globl {s.name}\n.p2align 8\n.type {s.name},@function\n{s.name}:\n"+"\n".join(s.L)+"\n"
    def desc(s):
        acc=(s.vgpr+3)//4*4
        return f""".p2align 6
.amdhsa_kernel {s.name}
  .amdhsa_next_free_vgpr {acc+s.agpr if s.agpr else s.vgpr}
  .amdhsa_next_free_sgpr 96
  .amdhsa_accum_offset {acc}
  .amdhsa_group_segment_fixed_size 0
  .amdhsa_kernarg_size 96
  .amdhsa_user_sgpr_count 2
  .amdhsa_user_sgpr_kernarg_segment_ptr 1
  .amdhsa_system_sgpr_workgroup_id_x 1
.end_amdhsa_kernel
"""
def build(ks):
    o=["; generated by gen/gen.py : adaLN + sliding-window attention + GLU FFN, hand-scheduled gfx950 kernels"]
    for k in ks: o.append(f"; @launch kernel={k.name} grid=({k.grid},1,1) block=({k.block},1,1) lds={k.lds}")
    o.append('.amdgcn_target "amdgcn-amd-amdhsa--gfx950"\n.text')
    seen=[]
    for k in ks:
        if k.name not in seen: o.append(k.text()); seen.append(k.name)
    o.append('.section .rodata,"a"')
    seen=[]
    for k in ks:
        if k.name not in seen: o.append(k.desc()); seen.append(k.name)
    return "\n".join(o)
def lane_setup(k,vl=1,sw=4):
    k.e(f"v_and_b32 v{vl}, 63, v0\nv_lshrrev_b32 v0, 6, v0\ns_nop 0\nv_readfirstlane_b32 s{sw}, v0")
def unpack(k,dst,src):
    k.e(f"v_lshlrev_b32 v{dst}, 16, v{src}\nv_and_b32 v{dst+1}, 0xffff0000, v{src}")
class Trk:
    def __init__(s,k): s.k=k; s.q={'vm':[], 'lg':[]}; s.done={'vm':0,'lg':0}
    def op(s,c,txt,tag):
        s.k.e(txt); s.q[c].append(tag)
    def log(s,c,tag,n=1): s.q[c]+= [tag]*n
    def wait(s,c,tag,emit=True):
        idx=[i for i,x in enumerate(s.q[c]) if x==tag]
        if not idx: raise Exception(f"no tag {tag}")
        last=idx[-1]+1
        if last<=s.done[c]: return
        n=len(s.q[c])-last
        mx=63 if c=='vm' else 15
        n=min(n,mx)
        s.k.e(f"s_waitcnt {'vmcnt' if c=='vm' else 'lgkmcnt'}({n})")
        s.done[c]=len(s.q[c])-n
import os
STAMP=os.environ.get('STAMP')=='1'
def stamp(k,i,real=False):
    if STAMP: k.e(f"s_mem{'real' if real else ''}time {sr(64+2*i,2)}")
def stamp_out(k,kidx,n=16,wsrd=12,sh=3):
    if not STAMP: return
    k.e(f"s_waitcnt vmcnt(0)\ns_memrealtime {sr(64+30,2)}\ns_waitcnt lgkmcnt(0)\ns_lshl_b32 s63, s2, {sh}\ns_add_u32 s63, s63, s4\ns_lshl_b32 s63, s63, 6\ns_add_u32 s63, s63, {0x1600000+kidx*0x20000}\nv_mov_b32 v0, 0")
    for i in range(16): k.e(f"v_mov_b32 v1, s{64+2*i}\nbuffer_store_dword v1, v0, {sr(wsrd,4)}, s63 offen offset:{4*i}")

SEL=os.environ.get('SEL','').split(',')
def st(k,name):
    if STAMP and name in SEL: k.e(f"s_memtime {sr(64+2*(1+SEL.index(name)),2)}")
```

```python
from common import *
import re
WS_FL=0x90000; WS_NONCE=WS_FL+0x8000; WS_MP=0xA0000
FM,F1,FA,F2,FB,F3,F4,F4A=range(8)
SC="sc1"
QSCALE=0.25*1.4426950408889634
LNW=int(os.environ.get('LNW','0'))
CT=int(os.environ.get('CT','1'))
JAS=int(os.environ.get('JAS','0')); JAF=int(os.environ.get('JAF','23'))
uid=[0]; PFR=int(os.environ.get('PFR','5'))
MAP=int(os.environ.get('MAP','0')); PFM=int(os.environ.get('PFM','5'))
def publish(k,ph,idx='s7',drain=True):
    e=k.e; uid[0]+=1
    e("s_waitcnt vmcnt(0)"); st(k,f"dr{ph}"); e("s_barrier"); flag(k,ph,idx)
def flag(k,ph,idx):
    e=k.e; uid[0]+=1
    e(f"s_cmp_lg_u32 s4, 0\ns_cbranch_scc1 PB{uid[0]}")
    e(f"s_lshl_b32 s98, {idx}, 3\ns_add_u32 s98, s98, {WS_FL+ph*2048}\nv_mov_b32 v252, s96\nv_mov_b32 v253, s97\nv_mov_b32 v254, 0\ns_mov_b64 exec, 1\nbuffer_store_dwordx2 v[252:253], v254, s[12:15], s98 offen {SC}\ns_mov_b64 exec, -1\nPB{uid[0]}:")
SL=int(os.environ.get('SL','4')); SLG=int(os.environ.get('SLG','8'))
def poll(k,items,r0=240,gran=False,one=False):
    e=k.e; uid[0]+=1; u=uid[0]
    if one: e(f"s_cmp_lg_u32 s4, 0\ns_cbranch_scc1 PD{u}")
    e(f"s_mov_b32 s99, 0\nPL{u}:")
    r=r0; regs=[]
    for va,so,wide in items:
        n=4 if wide else 2
        e(f"s_mov_b32 s98, {so}\nbuffer_load_dwordx{n} {vr(r,n)}, v{va}, s[12:15], s98 offen {SC}")
        regs+=[r+2] if gran else [r+2*i for i in range(n//2)]; r+=4
    e("s_add_u32 s99, s99, 1\ns_waitcnt vmcnt(0)")
    for i,q in enumerate(regs):
        e(f"v_cmp_ne_u64 {'vcc' if i==0 else 's[100:101]'}, s[96:97], {vr(q,2)}")
        if i: e("s_or_b64 vcc, vcc, s[100:101]")
    e(f"s_cmp_eq_u64 vcc, 0\ns_cbranch_scc1 PD{u}\ns_sleep {SLG if gran else SL}\ns_cmp_lt_u32 s99, 50000\ns_cbranch_scc1 PL{u}\nPD{u}:")
    if one: e("s_waitcnt vmcnt(0)\ns_barrier")
def allflags(ph): return [(2,WS_FL+ph*2048,1),(2,WS_FL+ph*2048+1024,1)]
JB=139264
WR=65536
def p1(k,jobA_issue):
    e=k.e; T=Trk(k)
    k.srds([('ws',12),('x',8),('c',16),('wm',20),('wqkv',24)])
    lane_setup(k,1,4)
    if CT:
        e("s_cmp_ge_u32 s2, 16\ns_cbranch_scc1 PK_FIRST\ns_getpc_b64 s[38:39]\ns_lshr_b32 s30, s2, 3\ns_lshl_b32 s30, s30, 2\ns_add_u32 s30, s30, s4\ns_lshl_b32 s30, s30, 13\nv_lshlrev_b32 v10, 7, v1\nv_add_u32 v10, s30, v10\nv_min_u32 v10, PK_LAST-PK_FIRST, v10\nv_mov_b32 v11, s39\nv_add_co_u32 v10, vcc, s38, v10\nv_addc_co_u32 v11, vcc, 0, v11, vcc\nglobal_load_dword v63, v[10:11], off\nPK_FIRST:")
    if MAP==0:
        e("s_and_b32 s5, s2, 6\ns_lshl_b32 s5, s5, 2\ns_lshr_b32 s6, s2, 5\ns_add_u32 s5, s5, s6")
        e("s_and_b32 s6, s2, 1\ns_lshl_b32 s6, s6, 2\ns_bfe_u32 s7, s2, 0x20003\ns_add_u32 s6, s6, s7")
    else:
        e("s_and_b32 s5, s2, 7\ns_lshl_b32 s5, s5, 2\ns_lshr_b32 s6, s2, 6\ns_add_u32 s5, s5, s6\ns_bfe_u32 s6, s2, 0x30003")
    e("s_lshl_b32 s7, s5, 3\ns_add_u32 s7, s7, s6")
    e("v_lshlrev_b32 v2, 4, v1\nv_lshrrev_b32 v3, 3, v1\nv_and_b32 v4, 7, v1\nv_lshlrev_b32 v4, 4, v4")
    e("s_movk_i32 s28, 6144\nv_mul_lo_u32 v5, v3, s28\nv_add_u32 v5, v5, v4\nv_lshlrev_b32 v6, 1, v3")
    e("s_and_b32 s29, s2, 3\ns_lshl_b32 s29, s29, 2\ns_add_u32 s29, s29, s4\ns_lshl_b32 s30, s29, 6\ns_mul_i32 s29, s29, 196608\ns_lshr_b32 s31, s2, 2\ns_lshl_b32 s31, s31, 7\ns_add_u32 s29, s29, s31")
    e("s_cmp_lt_u32 s2, 192\ns_cselect_b32 s29, s29, 0x7f000000")
    e("s_lshl_b32 s32, s5, 16\ns_lshl_b32 s33, s4, 14\ns_add_u32 s32, s32, s33")
    e("v_and_b32 v7, 16, v1\nv_lshlrev_b32 v7, 2, v7\nv_xor_b32 v7, v7, v4\nv_mul_u32_u24 v8, 3072, v3\nv_add_u32 v7, v7, v8")
    e(f"s_mul_i32 s34, s4, {8*3072}\ns_lshl_b32 s35, s6, 7\ns_add_u32 s34, s34, s35\ns_lshr_b32 s35, s4, 1\ns_mul_i32 s35, s35, 6144\ns_and_b32 s36, s4, 1\ns_lshl_b32 s36, s36, 10\ns_add_u32 s35, s35, s36\ns_add_u32 s35, s35, {WR}")
    e(f"s_waitcnt lgkmcnt(0)\ns_load_dwordx2 s[96:97], s[12:13], {WS_NONCE}")
    for i in range(4): T.op('vm',f"buffer_load_dwordx4 {vr(16+4*i,4)}, v5, s[20:23], s29 offen\ns_add_u32 s29, s29, 49152",'m')
    for i in range(4): T.op('vm',f"buffer_load_ushort v{12+i}, v6, s[16:19], s30 offen offset:{16*i}",'m')
    X=192; st(k,"karg")
    for i in range(16): e(f"buffer_load_dwordx4 {vr(X+4*i,4)}, v2, s[8:11], s32 offen offset:{(i&3)*1024}"+("\ns_add_u32 s32, s32, 4096" if i&3==3 else ""))
    def wst(g):
        return [(f"s_add_u32 m0, s35, {(g%6)*12288+p*2048}\ns_add_u32 s37, s34, {p*1024}\nbuffer_load_dwordx4 v7, s[24:27], s37 offen lds"+(f"\ns_add_u32 s34, s34, {32*3072}" if p==2 else ""),('w',g)) for p in range(3)]
    WQ_=[]
    for g in range(16): WQ_+=wst(g)
    def issue(n):
        for _ in range(n):
            if WQ_:
                x,g=WQ_.pop(0); T.op('vm',x,g)
    nt=1
    pfi="buffer_load_dword v62, v9, s[40:43], s44 offen"
    if PFM==1: e(pfi)
    elif PFM>=2: e(f"v_mul_u32_u24 v10, 3072, v1\ns_and_b32 s45, s5, 7\ns_mul_i32 s45, s45, {64*3072}\ns_lshl_b32 s33, s6, 7\ns_add_u32 s45, s45, s33\ns_min_u32 s33, s4, 2\ns_lshl_b32 s33, s33, 10\ns_add_u32 s45, s45, s33\nbuffer_load_dword v62, v10, s[24:27], s45 offen")
    else: nt=0
    if PFM==4: e(pfi); nt+=1
    e(f"s_waitcnt vmcnt({16+nt})")
    st(k,"mdata")
    for i in range(8): e(f"v_mov_b32 v{32+i}, 0")
    for i in range(4):
        r=12+i
        e(f"v_lshlrev_b32 v{r}, 16, v{r}\nv_mul_f32 v10, {f2u(-1.4426950408889634)}, v{r}\nv_exp_f32 v10, v10\ns_nop 0\nv_add_f32 v10, 1.0, v10\nv_rcp_f32 v10, v10\ns_nop 0\nv_mul_f32 v{r}, v{r}, v10\nv_cvt_pk_bf16_f32 v{r}, v{r}, v{r}\nv_lshlrev_b32 v{r}, 16, v{r}")
        for j in range(4):
            unpack(k,10,16+4*i+j)
            e(f"v_fmac_f32 v{32+2*j}, v10, v{r}\nv_fmac_f32 v{33+2*j}, v11, v{r}")
    e("s_lshl_b32 s30, s4, 11\nv_lshlrev_b32 v10, 8, v3\nv_lshl_add_u32 v10, v4, 1, v10\nv_add_u32 v10, s30, v10\nds_write_b128 v10, v[32:35]\nds_write_b128 v10, v[36:39] offset:16")
    e("s_waitcnt lgkmcnt(0)\ns_add_u32 s96, s96, 1\ns_addc_u32 s97, s97, 0\ns_barrier\ns_cmp_lg_u32 s4, 0\ns_cbranch_scc1 P0_A\ns_cmp_ge_u32 s2, 192\ns_cbranch_scc1 P0_A")
    e("v_and_b32 v10, 31, v1\nv_lshrrev_b32 v11, 5, v1\nv_lshlrev_b32 v11, 12, v11\nv_lshl_add_u32 v11, v10, 3, v11\nv_lshlrev_b32 v10, 4, v10")
    for j in range(16): e(f"ds_read_b64 {vr(16+2*j,2)}, v11 offset:{j*256}")
    e(f"s_and_b32 s29, s2, 3\ns_mul_i32 s29, s29, 24576\ns_lshl_b32 s30, s31, 2\ns_add_u32 s29, s29, s30\ns_add_u32 s29, s29, {WS_MP}\ns_waitcnt lgkmcnt(0)")
    for sz in (16,8,4,2):
        for j in range(sz): e(f"v_add_f32 v{16+j}, v{16+j}, v{16+j+sz}")
    e(f"v_mov_b32 v18, v16\nv_mov_b32 v19, v17\ns_nop 1\nv_permlane32_swap_b32 v16, v18\nv_permlane32_swap_b32 v17, v19\nv_add_f32 v56, v16, v18\nv_add_f32 v57, v17, v19\nv_mov_b32 v58, s96\nv_mov_b32 v59, s97\nbuffer_store_dwordx4 v[56:59], v10, s[12:15], s29 offen {SC}\nP0_A:")
    st(k,'modpub')
    if LNW==2: issue(18); nt+=18
    if PFM==2: e(pfi); nt+=1
    for i in range(16):
        e(f"s_waitcnt vmcnt({nt+15-i+(i if LNW==1 else 0)})")
        if i in (0,8): st(k,f"x{i}")
        for j in range(4):
            d=64+8*i+2*j
            unpack(k,d,X+4*i+j)
            if j==0: e(f"v_pk_mul_f32 v[50:51], {vr(d,2)}, {vr(d,2)}")
            else: e(f"v_pk_add_f32 v[48:49], {vr(d-2,2) if j==1 else 'v[48:49]'}, {vr(d,2)}\nv_pk_fma_f32 v[50:51], {vr(d,2)}, {vr(d,2)}, v[50:51]")
        e(f"v_add_f32 v{16+i}, v48, v49\nv_add_f32 v{32+i}, v50, v51")
        if LNW==1: issue(1)
    if LNW==1: issue(2)
    st(k,"lnsum")
    e("s_nop 1")
    for b in (16,32):
        for i in range(8): e(f"v_permlane32_swap_b32 v{b+i}, v{b+i+8}")
        for i in range(8): e(f"v_add_f32 v{b+i}, v{b+i}, v{b+i+8}")
    for b in (16,32):
        for i in range(4): e(f"v_permlane16_swap_b32 v{b+i}, v{b+i+4}")
    for b in (16,32):
        for i in range(4): e(f"v_add_f32 v{b+i}, v{b+i}, v{b+i+4}")
    for rot in (8,4,2,1):
        for b in (16,32):
            for i in range(4): e(f"v_add_f32_dpp v{b+i}, v{b+i}, v{b+i} row_ror:{rot} row_mask:0xf bank_mask:0xf")
    for i in range(4):
        e(f"v_mul_f32 v{16+i}, {f2u(1/512)}, v{16+i}\nv_mul_f32 v{32+i}, {f2u(1/512)}, v{32+i}\nv_fma_f32 v{32+i}, -v{16+i}, v{16+i}, v{32+i}\nv_max_f32 v{32+i}, 0, v{32+i}\nv_add_f32 v{32+i}, {f2u(1e-5)}, v{32+i}\nv_rsq_f32 v{32+i}, v{32+i}\ns_nop 0\nv_mul_f32 v{16+i}, v{16+i}, v{32+i}")
    e("s_nop 1")
    for i in range(16):
        q=((i>>2)&1)+2*(i>>3)
        e(f"v_readlane_b32 s{41+(i&1)*2}, v{16+(i&3)}, {16*q}\nv_readlane_b32 s{40+(i&1)*2}, v{32+(i&3)}, {16*q}\ns_nop 0\nv_mov_b32 v48, s{41+(i&1)*2}")
        for j in range(4): e(f"v_pk_fma_f32 {vr(64+8*i+2*j,2)}, {vr(64+8*i+2*j,2)}, {sr(40+(i&1)*2,2)}, v[48:49] op_sel_hi:[1,0,0] neg_lo:[0,0,1] neg_hi:[0,0,1]")
    e("v_and_b32 v10, 7, v1\ns_and_b32 s30, s4, 1\ns_lshl_b32 s30, s30, 8\ns_lshr_b32 s31, s4, 1\ns_lshl_b32 s31, s31, 15\ns_add_u32 s30, s30, s31\nv_lshlrev_b32 v10, 4, v10\nv_lshl_add_u32 v10, v1, 9, v10\nv_add_u32 v10, s30, v10")
    e("v_lshrrev_b32 v11, 5, v1\nv_and_b32 v12, 31, v1\nv_xor_b32 v12, v12, v11\nv_lshlrev_b32 v12, 4, v12\nv_lshl_add_u32 v12, v11, 9, v12\nv_add_u32 v12, s31, v12")
    for i in range(1,4): e(f"v_xor_b32 v{12+i}, {32*i}, v12")
    e("v_bfe_u32 v8, v1, 2, 2\nv_lshl_add_u32 v8, v11, 3, v8\nv_lshlrev_b32 v8, 7, v8\nv_and_b32 v9, 3, v1\nv_lshl_add_u32 v8, v9, 3, v8\nv_bfe_u32 v9, v1, 4, 1\nv_lshl_add_u32 v8, v9, 5, v8")
    e(f"v_bfe_u32 v9, v1, 3, 1\ns_and_b32 s30, s4, 1\nv_xor_b32 v9, s30, v9\nv_lshl_add_u32 v8, v9, 6, v8\nv_add_u32 v8, {WR}, v8\nv_add_u32 v9, 36864, v8\ns_lshl_b32 s30, s4, 10\nv_add_u32 v6, s30, v2\nv_lshlrev_b32 v5, 5, v1\nv_add_u32 v5, 155648, v5")
    st(k,'lndone')
    if LNW==0: issue(18)
    if PFM==3: e(pfi.replace('v9,','v61,').replace('s[40:43]','s[52:55]'))
    st(k,'wiss')
    modfin(k)
    poll(k,[(6,WS_MP+q*24576+a*4096,1) for a in range(2) for q in range(4)],192,True); T.done['vm']=len(T.q['vm'])
    st(k,'modok')
    for a in range(2):
        for x in range(2):
            r=192+16*a+x
            e(f"v_add_f32 v{r}, v{r}, v{r+4}\nv_add_f32 v{r+8}, v{r+8}, v{r+12}\nv_add_f32 v{16+2*a+x}, v{r}, v{r+8}")
        e(f"v_cvt_pk_bf16_f32 v11, v{16+2*a}, v{17+2*a}"); unpack(k,16+2*a,11)
    e("v_add_f32 v18, 1.0, v18\nv_add_f32 v19, 1.0, v19\nv_cvt_pk_bf16_f32 v11, v18, v19"); unpack(k,18,11)
    e("v_lshrrev_b32 v6, 1, v6\nv_add_u32 v6, 155648, v6\nds_write_b64 v6, v[16:17]\nds_write_b64 v6, v[18:19] offset:2048\ns_waitcnt lgkmcnt(0)\ns_barrier")
    for a in range(2):
        for hf in range(2): e(f"ds_read_b128 {vr(16+8*a+4*hf,4)}, v5 offset:{a*2048+hf*16}")
    e("s_waitcnt lgkmcnt(0)")
    for i in range(16):
        for j in range(4): e(f"v_pk_fma_f32 {vr(64+8*i+2*j,2)}, {vr(64+8*i+2*j,2)}, {vr(24+2*j,2)}, {vr(16+2*j,2)}")
        for j in range(4): e(f"v_cvt_pk_bf16_f32 v{64+8*i+j}, v{64+8*i+2*j}, v{64+8*i+2*j+1}")
        e(f"v_xor_b32 v11, {(i&7)*16}, v10\nds_write_b128 v11, {vr(64+8*i,4)} offset:{(i>>3)*128}")
    e("s_waitcnt lgkmcnt(0)\ns_barrier")
    st(k,'hready')
    ACC=64; FR=16
    def rd(s):
        f=FR+16*(s%3); o=(s%12)*6144; va=8 if o<36864 else 9; o%=36864
        L=[f"ds_read_b128 {vr(f,4)}, v{12+(s&3)} offset:{s*1024}"]
        for p in range(3): L+=[f"ds_read_b64_tr_b16 {vr(f+4+4*p+2*x,2)}, v{va} offset:{o+p*2048+x*512}" for x in range(2)]
        return L
    for s in range(2):
        for x in rd(s): T.op('lg',x,('b',s))
    for s in range(32):
        if s+2<32 and s%2==0 and s>0:
            g=(s+2)//2
            if g>=6: T.wait('vm',('w',g))
            e("s_barrier")
        if s==JAF:
            T.wait('vm','j'); job_finish(k,'A',112); T.log('vm','js',4); T.done['lg']=len(T.q['lg'])
        L=rd(s+2) if s+2<32 else []
        T.wait('lg',('b',s))
        f=FR+16*(s%3)
        for p in range(3):
            b=vr(f+4+4*p,4); h=vr(f,4); d=vr(ACC+16*p,16); c='0' if s==0 else d
            e(f"v_mfma_f32_32x32x16_bf16 {d}, {b}, {h}, {c}" if p<2 else f"v_mfma_f32_32x32x16_bf16 {d}, {h}, {b}, {c}")
            for _ in range(3 if p==0 else 2):
                if L: T.op('lg',L.pop(0),('b',s+2))
            if s>=2 and s%2==0: issue(1)
            if s==JAS and p==2: jobA_issue(T); T.done['lg']=len(T.q['lg'])
    st(k,"gemm1")
    e("s_lshl_b32 s16, s5, 1\ns_lshr_b32 s17, s4, 1\ns_add_u32 s16, s16, s17\ns_lshl_b32 s17, s6, 1\ns_and_b32 s18, s4, 1\ns_add_u32 s17, s17, s18")
    e(f"s_lshl_b32 s17, s17, 17\ns_lshl_b32 s18, s16, 10\ns_add_u32 s17, s17, s18\ns_add_u32 s19, s17, s18\ns_add_u32 s19, s19, {WS_V}\ns_mov_b32 s22, {f2u(QSCALE)}\ns_nop 1")
    e("s_and_b32 s30, s4, 1\ns_lshl_b32 s30, s30, 12\ns_lshr_b32 s31, s4, 1\ns_lshl_b32 s31, s31, 10\ns_add_u32 s30, s30, s31\ns_add_u32 s30, s30, 155648\nv_add_u32 v40, s30, v2")
    for p in (1,2,0):
        if p==0:
            for r in range(16): e(f"v_mul_f32 v{ACC+r}, s22, v{ACC+r}")
        for hh in range(2):
            d=16+(2*p+hh)*4
            for j in range(4): e(f"v_cvt_pk_bf16_f32 v{d+j}, v{ACC+16*p+8*hh+2*j}, v{ACC+16*p+8*hh+2*j+1}")
            if p==0: e(f"ds_write_b128 v40, {vr(d,4)} offset:{hh*2048}")
            elif p<2: e(f"s_add_u32 s20, s17, {(WS_Q,WS_K)[p]+hh*65536}\nbuffer_store_dwordx4 {vr(d,4)}, v2, s[12:15], s20 offen {SC}")
            else: e(f"buffer_store_dwordx4 {vr(d,4)}, v2, s[12:15], s19 offen offset:{hh*1024} {SC}")
    st(k,'p1end')
    p2_setup(k)
    e('s_waitcnt lgkmcnt(0)')
    publish(k,F1); flag(k,FA,'s2')

def job_issue(k,rnd,jb):
    e=lambda x: k.e(x.replace('v60','v172').replace('v61','v173').replace('v62','v174') if rnd=='A' else x)
    e(f"v_lshrrev_b32 v60, 3, v1\nv_and_b32 v61, 7, v1\nv_lshlrev_b32 v61, 4, v61\nv_and_b32 v62, 16, v1\nv_lshlrev_b32 v62, 2, v62\nv_xor_b32 v61, v61, v62\ns_lshl_b32 s56, s4, 12\ns_add_u32 s56, s56, {jb}")
    if rnd=='A':
        e("s_cmp_ge_u32 s2, 224\ns_cbranch_scc1 JI_A1")
        k.srds([('wg',48),('wu',52)])
        e("s_lshr_b32 s57, s2, 3\ns_and_b32 s58, s2, 7\ns_lshl_b32 s58, s58, 2\ns_add_u32 s58, s58, s4")
        e(f"v_mul_u32_u24 v60, 3584, v60\nv_xor_b32 v62, 32, v61\nv_add_u32 v62, v60, v62\nv_add_u32 v60, v60, v61\ns_mul_i32 s59, s58, {16*3584}\ns_lshl_b32 s60, s57, 7\ns_add_u32 s59, s59, s60\ns_add_u32 s60, s59, {8*3584}\ns_waitcnt lgkmcnt(0)")
        for m in range(2):
            for hf in range(2): e(f"s_add_u32 m0, s56, {m*2048+hf*1024}\ns_nop 0\nbuffer_load_dwordx4 v{60+2*m}, {sr(48+4*m,4)}, s{59+hf} offen lds")
        for b in range(4):
            e(f"s_lshl_b32 s59, s57, 2\ns_add_u32 s59, s59, {b}\ns_mul_i32 s60, s59, 9363\ns_lshr_b32 s60, s60, 16\ns_mul_i32 s61, s60, 7\ns_sub_u32 s59, s59, s61")
            e(f"s_lshl_b32 s61, s58, 2\ns_mul_i32 s62, s58, 3\ns_add_u32 s62, s62, 124\ns_cmp_lt_u32 s59, 4\ns_cselect_b32 s61, s61, s62\ns_add_u32 s61, s61, s59\ns_mul_i32 s60, s60, 224\ns_add_u32 s61, s61, s60\ns_lshl_b32 s61, s61, 10\ns_add_u32 s{44+b}, s61, {WS_WGU}")
        e("s_branch JI_A2\nJI_A1:")
    else: e("s_cmp_ge_u32 s2, 112\ns_cbranch_scc1 JI_B2")
    nm,base,blk,sub=(('wo',WS_WO,32768,224) if rnd=='A' else ('wd',WS_WD,114688,0))
    k.srds([(nm,48)])
    e(f"s_sub_u32 s57, s2, {sub}\ns_and_b32 s58, s57, 7\ns_lshr_b32 s57, s57, 3\ns_lshl_b32 s57, s57, 3\ns_lshl_b32 s59, s4, 1\ns_add_u32 s57, s57, s59")
    e(f"s_mul_i32 s44, s58, {2*blk}\ns_lshl_b32 s59, s57, 10\ns_add_u32 s44, s44, s59\ns_add_u32 s44, s44, {base}\ns_add_u32 s45, s44, {blk}\ns_add_u32 s46, s44, 1024\ns_add_u32 s47, s45, 1024")
    e("s_lshl_b32 s59, s57, 14\ns_lshl_b32 s60, s58, 7\ns_add_u32 s59, s59, s60\nv_lshl_add_u32 v60, v60, 10, v61\ns_waitcnt lgkmcnt(0)")
    for i in range(4): e(f"s_add_u32 m0, s56, {i*1024}\ns_nop 0\nbuffer_load_dwordx4 v60, s[48:51], s59 offen lds\ns_add_u32 s59, s59, 8192")
    e(f"JI_{rnd}2:")
def job_finish(k,rnd,sh=0):
    e=lambda x: k.e(re.sub(r'\bv\[?(\d+)(:(\d+)\])?',lambda m: m.group(0) if int(m.group(1))<16 else (f'v[{int(m.group(1))+sh}:{int(m.group(3))+sh}]' if m.group(2) else f'v{int(m.group(1))+sh}'),x))
    if rnd=='B': e("s_cmp_ge_u32 s2, 112\ns_cbranch_scc1 JF_B9")
    e("v_lshrrev_b32 v36, 5, v1\nv_bfe_u32 v37, v1, 2, 2\nv_bfe_u32 v38, v1, 4, 1\nv_and_b32 v39, 3, v1\nv_bfe_u32 v40, v1, 3, 1")
    e("v_lshlrev_b32 v32, 7, v37\nv_lshl_add_u32 v32, v39, 3, v32\nv_lshl_add_u32 v32, v38, 5, v32\nv_lshl_add_u32 v32, v40, 6, v32\nv_lshl_add_u32 v32, v36, 9, v32\nv_add_u32 v32, s56, v32")
    e("v_xor_b32 v33, 64, v32\nv_add_u32 v34, 2048, v32\nv_add_u32 v35, 2048, v33")
    if rnd=='A':
        e("s_cmp_ge_u32 s2, 224\ns_cbranch_scc1 JF_A1\nv_lshl_add_u32 v32, v38, 11, v32\nv_xor_b32 v33, 32, v32\nv_xor_b32 v34, 64, v32\nv_xor_b32 v35, 96, v32\nJF_A1:")
    for b in range(4): e(f"ds_read_b64_tr_b16 {vr(16+4*b,2)}, v{32+b}\nds_read_b64_tr_b16 {vr(18+4*b,2)}, v{32+b} offset:1024")
    e("s_waitcnt lgkmcnt(0)")
    for b in range(4): e(f"buffer_store_dwordx4 {vr(16+4*b,4)}, v2, s[12:15], s{44+b} offen {SC}")
    if rnd=='B': e("JF_B9:")
def modfin(k):
    e=k.e
    e("s_cmp_lt_u32 s2, 224\ns_cbranch_scc1 MF9\ns_cmp_lg_u32 s4, 0\ns_cbranch_scc1 MF9")
    e("s_sub_u32 s30, s2, 208\nv_and_b32 v36, 31, v1\nv_lshlrev_b32 v36, 4, v36\ns_lshl_b32 s31, s30, 9\nv_add_u32 v36, s31, v36")
    poll(k,[(36,WS_MP+q*24576,1) for q in range(4)],40,True)
    e("s_lshr_b32 s30, s30, 3\ns_cmp_eq_u32 s30, 4\ns_cselect_b32 s30, 1.0, 0\nv_lshrrev_b32 v36, 1, v36")
    for x in range(2): e(f"v_add_f32 v{40+x}, v{40+x}, v{44+x}\nv_add_f32 v{48+x}, v{48+x}, v{52+x}\nv_add_f32 v{38+x}, v{40+x}, v{48+x}")
    e("v_cvt_pk_bf16_f32 v37, v38, v39"); unpack(k,38,37)
    e("v_add_f32 v38, s30, v38\nv_add_f32 v39, s30, v39\nv_cvt_pk_bf16_f32 v37, v38, v39"); unpack(k,38,37)
    e(f"buffer_store_dwordx2 v[38:39], v36, s[12:15], 0 offen {SC}\nMF9:")
def p2_setup(k):
    e=k.e; MK=240
    e("v_mov_b32 v8, 0x3f803f80")
    for r in range(48,128): e(f"v_accvgpr_write_b32 a{r}, v8")
    e("v_and_b32 v8, 31, v1\nv_lshrrev_b32 v9, 5, v1\nv_lshlrev_b32 v9, 2, v9\nv_sub_u32 v14, v8, v9\nv_mov_b32 v8, 0xffff\nv_mov_b32 v9, 0xffff0000")
    for r in range(8):
        c=lambda x: 8*(x>>2)+(x&3)
        e(f"v_cmp_le_i32 vcc, {c(2*r)}, v14\nv_cmp_le_i32 s[30:31], {c(2*r+1)}, v14\ns_nop 0\nv_cndmask_b32 v10, 0, v8, vcc\nv_cndmask_b32 v11, 0, v9, s[30:31]\nv_or_b32 v{MK+r}, v10, v11")
    e("s_lshl_b32 s19, s5, 1\ns_lshl_b32 s20, s6, 2\ns_add_u32 s20, s20, s4")
    e(f"s_lshl_b32 s21, s20, 16\ns_lshl_b32 s22, s19, 10\ns_add_u32 s22, s22, s21\ns_add_u32 s22, s22, {WS_Q}\ns_add_u32 s21, s21, {WS_K}")
    e(f"s_lshr_b32 s23, s20, 1\ns_lshl_b32 s23, s23, 17\ns_and_b32 s24, s4, 1\ns_lshl_b32 s24, s24, 8\ns_add_u32 s23, s23, s24\ns_add_u32 s23, s23, {WS_V}")
    e("v_min_u32 v8, 4, v1\nv_sub_u32 v8, s5, v8\nv_max_i32 v8, 0, v8\nv_lshlrev_b32 v8, 6, v8\ns_lshl_b32 s30, s6, 3\nv_add_u32 v8, s30, v8")
def p2(k,after_loads,mid):
    e=k.e; T=Trk(k)
    S=64; O=208; NM=224; MK=240; PF=[]
    st(k,'p2pre')
    e("s_lshl_b32 s30, s4, 11\ns_add_u32 s30, s30, 155648\nv_add_u32 v9, s30, v2\nds_read_b128 a[0:3], v9\nds_read_b128 a[4:7], v9 offset:1024")
    poll(k,[(8,WS_FL+F1*2048,0)],248,one=True); e("s_waitcnt lgkmcnt(0)")
    st(k,'f1ok')
    for i in range(5):
        e(f"s_add_i32 s28, s19, {2*i-8}\ns_max_i32 s28, s28, 0\ns_lshl_b32 s29, s28, 10\ns_add_u32 s30, s29, s21")
        for x in range(2): T.op('vm',f"buffer_load_dwordx4 {vr(8+8*i+4*x,4,'a')}, v2, s[12:15], s30 offen offset:{x*1024} {SC}",'k')
    VL=[]
    for i in range(5):
        for x in range(4): VL.append((f"s_add_i32 s28, s19, {2*i-8}\ns_max_i32 s28, s28, 0\ns_lshl_b32 s29, s28, 11\ns_add_u32 s30, s29, s23\n" if x==0 else "")+f"s_mov_b64 exec, s[26:27]\nbuffer_load_dwordx4 {vr(48+16*i+4*x,4,'a')}, v2, s[12:15], s30 offen offset:{x*1024} {SC}\ns_mov_b64 exec, -1")
    e("s_mov_b32 s26, 0xffff\ns_mov_b32 s27, 0xffff")
    for _ in range(8): T.op('vm',VL.pop(0),'v')
    e("s_and_b32 s40, s5, 1\ns_lshl_b32 s40, s40, 3\ns_add_u32 s40, s40, s6\ns_mul_i32 s31, s40, 7\ns_lshr_b32 s31, s31, 2\ns_lshl_b32 s31, s31, 3\ns_sub_u32 s31, s31, 32\nv_min_u32 v15, 55, v1\nv_add_u32 v15, s31, v15\nv_add_u32 v13, 224, v1\nv_cmp_gt_u32 vcc, 32, v1\ns_nop 1\nv_cndmask_b32 v15, v15, v13, vcc\nv_lshlrev_b32 v15, 3, v15")
    e(f"s_lshl_b32 s25, s19, 15\ns_lshl_b32 s21, s20, 10\ns_add_u32 s25, s25, s21\ns_add_u32 s25, s25, {WS_O}")
    st(k,'p2iss'); T.wait('vm','k'); st(k,'p2k')
    for it in range(2):
        Q=vr(4*it,4,'a'); Kf=lambda t: vr(8+4*(t+it),4,'a'); Vf=lambda f: vr(48+8*it+4*f,4,'a')
        e(f"v_mfma_f32_32x32x16_bf16 {vr(S+128,16)}, {Kf(8)}, {Q}, 0")
        for t in range(8):
            e(f"s_cmp_lt_u32 s19, {8-t-it}\ns_cbranch_scc1 P2F{it}{t}\nv_mfma_f32_32x32x16_bf16 {vr(S+16*t,16)}, {Kf(t)}, {Q}, 0\nP2N{it}{t}:")
        for r in range(16): e(f"v_cmp_le_i32 vcc, {8*(r>>2)+(r&3)}, v14\ns_nop 1\nv_cndmask_b32 v{S+r}, v{S+r}, v{S+128+r}, vcc" if False else f"v_cmp_le_i32 {sr(32+2*(r&3),2)}, {8*(r>>2)+(r&3)}, v14"+("".join(f"\nv_cndmask_b32 v{S+r-3+x}, v{S+r-3+x}, v{S+125+r+x}, {sr(32+2*x,2)}" for x in range(4)) if r&3==3 else ""))
        e(f"v_max3_f32 v8, v{S}, v{S+1}, v{S+2}\nv_max3_f32 v9, v{S+3}, v{S+4}, v{S+5}")
        for r in range(6,126,4):
            e(f"v_max3_f32 v8, v8, v{S+r}, v{S+r+1}\nv_max3_f32 v9, v9, v{S+r+2}, v{S+r+3}")
            if VL and r%8==6: e(VL.pop(0))
            elif it==1 and PF and r%16==6: e(PF.pop(0))
        if it==0: e(f"s_mov_b32 s98, {WS_FL+FA*2048}\nbuffer_load_dwordx2 v[16:17], v15, s[12:15], s98 offen {SC}")
        e(f"v_max3_f32 v8, v8, v{S+126}, v{S+127}\nv_max_f32 v8, v8, v9\nv_mov_b32 v9, v8\ns_nop 1\nv_permlane32_swap_b32 v8, v9\nv_max_f32 v8, v8, v9")
        for r in range(16): e(f"v_sub_f32 v{NM+r}, 0, v8")
        def re(t): e(f"s_cmp_lt_u32 s19, {8-t-it}\ns_cbranch_scc1 P2S{it}{t}\nv_mfma_f32_32x32x16_bf16 {vr(S+16*t,16)}, {Kf(t)}, {Q}, {vr(NM,16)}\nP2S{it}{t}:")
        st(k,f'p2max{it}'); re(1)
        for r in range(16): e(f"v_sub_f32 v{S+r}, v{S+r}, v8")
        first=[True]
        def pv(f,b):
            e(f"v_mfma_f32_32x32x16_bf16 {vr(O,16)}, {Vf(f)}, {vr(b,4)}, {'0' if first[0] else vr(O,16)}"); first[0]=False
        pend=[]
        for t in range(8):
            b=S+16*t
            for hf in range(2):
                for r in range(8*hf,8*hf+8):
                    e(f"v_exp_f32 v{b+r}, v{b+r}")
                    if r==8*hf+1 and pend: pv(*pend.pop(0))
                    if r==5 and 2<=t+2<8: re(t+2)
                    if r==13 and len(pend)>1: pv(*pend.pop(0))
                    if r%PFR==0 and PF: e(PF.pop(0))
                if hf==0 or t>0: e("s_nop 0")
                else: e("s_nop 0")
                for j in range(4): e(f"v_cvt_pk_bf16_f32 v{b+4*hf+j}, v{b+8*hf+2*j}, v{b+8*hf+2*j+1}")
                if t>0: pend.append((2*t+hf,b+4*hf))
            if t==0:
                for j in range(8): e(f"v_and_b32 v{S+8+j}, v{MK+j}, v{S+j}\nv_xor_b32 v{S+j}, v{S+8+j}, v{S+j}")
                pend+=[(0,S),(1,S+4),(16,S+8),(17,S+12)]
                if it==0:
                    e("s_waitcnt vmcnt(0)"); st(k,'p2v0')
                    e("v_cmp_ne_u64 vcc, s[96:97], v[16:17]\ns_cmp_eq_u64 vcc, 0\ns_cbranch_scc1 FAOK"); poll(k,[(15,WS_FL+FA*2048,0)],16); e("FAOK:")
                    st(k,'faok'); after_loads(T); PF=mid()
        e("s_nop 1")
        while pend: pv(*pend.pop(0))
        st(k,f'p2exp{it}')
        e(f"s_nop 7\ns_nop 3\nv_rcp_f32 v8, v{O+8}\ns_nop 0")
        for r in range(8): e(f"v_mul_f32 v{O+r}, v{O+r}, v8")
        for j in range(4): e(f"v_cvt_pk_bf16_f32 v{24+4*it+j}, v{O+2*j}, v{O+2*j+1}")
        if it==1:
            for x in PF: e(x)
        e(f"buffer_store_dwordx4 {vr(24+4*it,4)}, v2, s[12:15], s25 offen {SC}\ns_add_u32 s25, s25, 32768")
    st(k,'p2end')
    publish(k,F2)
def p2_cold(k):
    for it in range(2):
        for t in range(8):
            k.e(f"P2F{it}{t}:")
            for r in range(16): k.e(f"v_mov_b32 v{64+16*t+r}, {f2u(-1e30)}")
            k.e(f"s_branch P2N{it}{t}")
    k.e("PK_LAST:\ns_endpgm")
```

```python
from pk import *
ACC=16; BFR=64; FPOS=int(os.environ.get('FPOS','16'))
def ks_setup(k,ns,abase,wbase,ksteps,rbase,sa,sw):
    e=k.e
    e(f"s_mul_i32 s{sa}, s5, {2*ksteps*1024}\ns_mul_i32 s20, s4, {ns*1024}\ns_add_u32 s{sa}, s{sa}, s20\ns_add_u32 s{sa}, s{sa}, {abase}\ns_add_u32 s{sa+1}, s{sa}, {ksteps*1024}")
    e(f"s_mul_i32 s{sw}, s6, {2*ksteps*1024}\ns_add_u32 s{sw}, s{sw}, s20\ns_add_u32 s{sw}, s{sw}, {wbase}\ns_add_u32 s{sw+1}, s{sw}, {ksteps*1024}")
    e(f"s_bitcmp1_b32 s4, 1\ns_cselect_b32 s20, s{sa}, s{sa+1}\ns_cselect_b32 s{sa+1}, s{sa+1}, s{sa}\ns_mov_b32 s{sa}, s20\ns_bitcmp1_b32 s4, 0\ns_cselect_b32 s20, s{sw}, s{sw+1}\ns_cselect_b32 s{sw+1}, s{sw+1}, s{sw}\ns_mov_b32 s{sw}, s20")
def ks_pos(k,rbase,v0=4):
    e=k.e
    for i in range(4): e(f"s_xor_b32 s20, s4, {3-i}\ns_mul_i32 s20, s20, 12288\ns_add_u32 s20, s20, {rbase}\nv_add_u32 v{v0+i}, s20, v2")
    e("s_lshr_b32 s22, s4, 1\ns_lshl_b32 s21, s5, 1\ns_add_u32 s22, s22, s21\ns_and_b32 s23, s4, 1\ns_lshl_b32 s21, s6, 1\ns_add_u32 s23, s23, s21")
    e("v_and_b32 v10, 31, v1\nv_lshrrev_b32 v11, 5, v1\nv_lshlrev_b32 v10, 10, v10\nv_lshl_add_u32 v10, v11, 4, v10\nv_lshlrev_b32 v11, 4, v11")
def ld2(reg,p,sg,s):
    return [f"buffer_load_dwordx4 {vr(reg+4*i,4,p)}, v2, s[12:15], s{sg+i} offen offset:{(s&3)*1024} {SC}"+(f"\ns_add_u32 s{sg+i}, s{sg+i}, 4096" if s&3==3 else "") for i in range(2)]
def ld5(reg,p,sg,s):
    o,last=((s&3),(s&3)==3) if s<16 else ((s-16)%3,(s-16)%3==2)
    inc=7168 if s!=15 else (4096-3*7168)&0xffffffff
    return [f"buffer_load_dwordx4 {vr(reg+4*i,4,p)}, v2, s[12:15], s{sg+i} offen offset:{o*1024} {SC}"+(f"\ns_add_u32 s{sg+i}, s{sg+i}, {inc}" if last else "") for i in range(2)]
def ks_main(k,ns,sa,areg,ap,depth,wreg,post=None):
    e=k.e; T=Trk(k); Q=[]
    for s in range(ns): Q+=[(x,(s,i)) for i,x in enumerate((ld5 if ns==28 else ld2)(areg+8*(s%depth),ap,sa,s))]
    if ns==28: Q.insert(FPOS,(f"s_mov_b32 s98, {WS_FL+F4*2048}\nbuffer_load_dwordx2 v[14:15], v12, s[12:15], s98 offen {SC}",'f'))
    def issue(n):
        for _ in range(n):
            if Q:
                if Q[0][1]==(16,0) and not chk[0]: return
                x,g=Q.pop(0); T.op('vm',x,g)
    chk=[False]
    issue(2*(depth-1)+(1 if ns==28 else 0))
    if post: post(T)
    for s in range(ns):
        a=areg+8*(s%depth)
        for t in range(2):
            if ns==28 and t==0 and s==FPOS//2:
                T.wait('vm','f'); e("v_cmp_ne_u64 vcc, s[96:97], v[14:15]\ns_cmp_eq_u64 vcc, 0\ns_cbranch_scc1 F4OK"); poll(k,[(12,WS_FL+F4*2048,0)],96); e("F4OK:"); st(k,'f4ok')
                chk[0]=True; issue(2*s)
            T.wait('vm',(s,t))
            if t==0 and s in (0,12): st(k,f'ks{ns}_{s}')
            for bb in range(2):
                d=vr(ACC+16*(2*t+bb),16)
                e(f"v_mfma_f32_32x32x16_bf16 {d}, {vr(wreg(s)+4*bb,4,'a')}, {vr(a+4*t,4,ap)}, {'0' if s==0 else d}")
            issue(1)
    st(k,f"ks{ns}_mm")
    e("s_nop 9")
    for i in range(3):
        for qd in range(4): e(f"ds_write_b128 v7, {vr(ACC+16*i+4*qd,4)} offset:{i*4096+qd*1024}")
    e("s_waitcnt lgkmcnt(0)\ns_barrier")
    for i in range(3):
        for qd in range(4): e(f"ds_read_b128 {vr(ACC+16*i+4*qd,4)}, v{4+i} offset:{i*4096+qd*1024}")
    for i in range(3):
        for qd in range(4):
            e(f"s_waitcnt lgkmcnt({11-4*i-qd})")
            for r in range(4*qd,4*qd+4,2): e(f"v_pk_add_f32 {vr(BFR+r,2)}, {vr(BFR+r,2)}, {vr(ACC+16*i+r,2)}")
def b_issue(k,T):
    e=k.e
    job_issue(k,'B',JB)
    e("s_mov_b32 s57, 0x7f000000\ns_cmp_lt_u32 s2, 112\ns_cbranch_scc1 BI4\ns_cmp_ge_u32 s2, 224\ns_cbranch_scc1 BI4")
    e("s_sub_u32 s44, s2, 112")
    k.srds([('wg',48),('wu',52)])
    e(f"v_lshrrev_b32 v12, 2, v1\nv_and_b32 v13, 3, v1\nv_mul_u32_u24 v12, 3584, v12\nv_lshl_add_u32 v12, v13, 4, v12\ns_waitcnt lgkmcnt(0)\ns_cmp_ge_u32 s44, 56\ns_cselect_b32 s48, s52, s48\ns_cselect_b32 s49, s53, s49\ns_cselect_b32 s58, 56, 0\ns_cselect_b32 s45, 1024, 0\ns_sub_u32 s44, s44, s58")
    e(f"s_mul_i32 s58, s4, {128*3584}\ns_lshl_b32 s59, s44, 6\ns_add_u32 s58, s58, s59")
    for i in range(8): e(f"buffer_load_dwordx4 {vr(32+4*i,4)}, v12, s[48:51], s58 offen\ns_add_u32 s58, s58, {16*3584}")
    e("BI4:")
def cs_finish(k):
    e=k.e
    e(f"s_cmp_lt_u32 s2, 112\ns_cbranch_scc1 CS9\ns_cmp_ge_u32 s2, 224\ns_cbranch_scc1 CS9")
    for i in range(16): e(f"v_accvgpr_read_b32 v{16+i}, a{232+i}")
    for i in range(16): e(f"v_mov_b32 v{64+i}, 0")
    for i in range(8):
        for j in range(4):
            unpack(k,14,32+4*i+j)
            e(f"v_fmac_f32 v{64+2*j}, v14, v{24+i}\nv_fmac_f32 v{65+2*j}, v15, v{24+i}\nv_fmac_f32 v{72+2*j}, v14, v{16+i}\nv_fmac_f32 v{73+2*j}, v15, v{16+i}")
    e(f"s_lshl_b32 s57, s4, 11\ns_add_u32 s57, s57, {JB}\nv_lshlrev_b32 v12, 5, v1\nv_add_u32 v12, s57, v12")
    e("ds_write_b128 v12, v[64:67]\nds_write_b128 v12, v[68:71] offset:16\nds_write_b128 v12, v[72:75] offset:8192\nds_write_b128 v12, v[76:79] offset:8208")
    e("s_waitcnt lgkmcnt(0)\ns_barrier\ns_cmp_ge_u32 s4, 2\ns_cbranch_scc1 CS9")
    e(f"v_and_b32 v13, 31, v1\nv_lshrrev_b32 v14, 5, v1\nv_lshlrev_b32 v12, 2, v13\nv_lshl_add_u32 v12, v14, 12, v12\ns_lshl_b32 s57, s4, 13\ns_add_u32 s57, s57, {JB}\nv_add_u32 v12, s57, v12")
    for j in range(32): e(f"ds_read_b32 v{16+j}, v12 offset:{j*128}")
    e("s_waitcnt lgkmcnt(0)")
    for sz in (16,8,4,2,1):
        for j in range(sz): e(f"v_add_f32 v{16+j}, v{16+j}, v{16+j+sz}")
    e("v_mov_b32 v17, v16\ns_nop 1\nv_permlane32_swap_b32 v16, v17\nv_add_f32 v16, v16, v17")
    e("s_lshl_b32 s57, s44, 5\nv_add_u32 v13, s57, v13\nv_mul_u32_u24 v14, 9363, v13\nv_lshrrev_b32 v14, 20, v14\nv_mul_u32_u24 v14, 400, v14\nv_add_u32 v13, v13, v14\nv_lshlrev_b32 v13, 2, v13")
    e(f"s_lshl_b32 s57, s4, 9\ns_add_u32 s57, s57, s45\ns_add_u32 s57, s57, {WS_CS}\nbuffer_store_dword v16, v13, s[12:15], s57 offen {SC}\nCS9:")
def b1(g):
    return [("s_mov_b32 m0, s43\ns_nop 0\n" if i==0 else "")+f"buffer_load_dwordx4 v2, s[12:15], s42 offen offset:{i*1024} {SC} lds"+("\ns_add_u32 s42, s42, 16384\ns_add_u32 s43, s43, 16384" if i==3 else "") for i in range(4)]
NB1=int(os.environ.get('NB1','7'))
def p3_pref(k):
    e=k.e
    ks_setup(k,8,WS_O,WS_WO,32,0,16,26); ks_pos(k,114688,4)
    e(f"s_and_b32 s40, s5, 1\ns_lshl_b32 s40, s40, 3\ns_add_u32 s40, s40, s6\ns_mul_i32 s41, s40, 229376\ns_add_u32 s41, s41, {WS_WGU}\ns_lshl_b32 s43, s4, 12\ns_add_u32 s42, s41, s43")
    e(f"s_lshl_b32 s28, s22, 15\ns_lshl_b32 s29, s23, 6\ns_add_u32 s28, s28, s29\ns_lshl_b32 s29, s23, 7\ns_add_u32 s30, s29, 4096\ns_add_u32 s31, s29, 8192")
    e(f"v_and_b32 v15, 0x3c, v1\ns_lshl_b32 s57, s4, 9\ns_add_u32 s57, s57, {1536*4}\ns_cmp_lt_u32 s2, 112\ns_cbranch_scc1 PF9\ns_cmp_ge_u32 s2, 224\ns_cbranch_scc1 PF9")
    for i in range(8): e(f"buffer_load_dword a{232+i}, v15, s[12:15], s57 offen offset:{64*i} {SC}\nbuffer_load_dword a{240+i}, v15, s[12:15], s57 offen offset:{2048+64*i} {SC}")
    e("PF9:")
    L=[]
    for s in range(8): L+=ld2(128+8*s,'a',26,s)
    L+=[f"buffer_load_dwordx4 {vr(192+4*q,4,'a')}, v10, s[8:11], s28 offen offset:{32*q}" for q in range(2)]
    for q in range(4): L+=[f"buffer_load_dwordx4 {vr(200+4*q,4,'a')}, v11, s[12:15], s30 offen offset:{32*q} {SC}",f"buffer_load_dwordx4 {vr(216+4*q,4,'a')}, v11, s[12:15], s31 offen offset:{32*q} {SC}"]
    for g in range(NB1): L+=b1(g)
    return L
def p3(k):
    e=k.e
    X=80; GA=88; CB=104
    job_finish(k,'B'); cs_finish(k); st(k,'jobB')
    e("v_and_b32 v12, 7, v1\nv_lshlrev_b32 v12, 3, v12\ns_lshl_b32 s28, s5, 6\nv_add_u32 v12, s28, v12")
    st(k,'p3pre')
    poll(k,[(12,WS_FL+F2*2048,0)],one=True); flag(k,FB,'s2')
    st(k,'f2ok')
    def post(T):
        for r in range(40): e(f"v_accvgpr_read_b32 v{80+r}, a{192+r}")
    ks_main(k,8,16,0,'a',9,lambda s:128+8*s,post)
    st(k,'p3red')
    e("v_mov_b32 v12, 0\nv_mov_b32 v13, 0")
    for q in range(2): e(f"v_permlane32_swap_b32 v{X+4*q}, v{X+4*q+2}\nv_permlane32_swap_b32 v{X+4*q+1}, v{X+4*q+3}")
    R=BFR
    for j in range(8):
        unpack(k,14,X+j)
        e(f"v_fma_f32 v14, v{R+2*j}, v{GA+2*j}, v14\nv_fma_f32 v15, v{R+2*j+1}, v{GA+2*j+1}, v15\nv_cvt_pk_bf16_f32 v{16+j}, v14, v15")
        unpack(k,14,16+j)
        e(f"v_add_f32 v12, v12, v14\nv_fmac_f32 v13, v14, v14\nv_add_f32 v12, v12, v15\nv_fmac_f32 v13, v15, v15")
        e(f"v_mul_f32 v14, v14, v{CB+2*j}\nv_mul_f32 v15, v15, v{CB+2*j+1}\nv_cvt_pk_bf16_f32 v{24+j}, v14, v15")
    e(f"s_lshl_b32 s28, s22, 15\ns_lshl_b32 s29, s23, 11\ns_add_u32 s28, s28, s29\ns_add_u32 s29, s28, {WS_Y2}")
    e(f"buffer_store_dwordx4 v[24:27], v2, s[12:15], s29 offen {SC}\nbuffer_store_dwordx4 v[28:31], v2, s[12:15], s29 offen offset:1024 {SC}")
    e(f"s_lshl_b32 s28, s22, 12\ns_lshl_b32 s29, s23, 8\ns_add_u32 s28, s28, s29\ns_add_u32 s28, s28, {WS_ST}\nv_and_b32 v3, 31, v1\nv_lshlrev_b32 v3, 3, v3")
    e("v_mov_b32 v14, v12\nv_mov_b32 v15, v13\ns_nop 1\nv_permlane32_swap_b32 v12, v14\nv_permlane32_swap_b32 v13, v15\nv_add_f32 v12, v12, v14\nv_add_f32 v13, v13, v15")
    e(f"buffer_store_dwordx2 v[12:13], v3, s[12:15], s28 offen {SC}")
    for j in range(8): e(f"v_mov_b32 v{112+j}, v{16+j}")
    st(k,'p3end'); publish(k,F3)
    for g in range(NB1,8):
        for x in b1(g): e(x)
def p5(k):
    e=k.e
    X=112; GB=80
    ks_pos(k,0)
    k.srds([('out',24)])
    e("s_lshl_b32 s29, s23, 7\ns_add_u32 s30, s29, 10240")
    for q in range(4): e(f"buffer_load_dwordx4 {vr(GB+4*q,4)}, v11, s[12:15], s30 offen offset:{32*q} {SC}")
    e("v_cmp_ne_u64 vcc, s[96:97], v[14:15]\ns_cmp_eq_u64 vcc, 0\ns_cbranch_scc1 F4AOK"); poll(k,[(12,WS_FL+F4A*2048,0)],96); e("F4AOK:")
    st(k,'p5pre')
    ks_main(k,28,38,120,'v',17,lambda s: 128+8*s if s<16 else 8*(s-16))
    st(k,'p5red')
    R=BFR
    for j in range(8):
        unpack(k,14,X+j)
        e(f"v_fma_f32 v14, v{R+2*j}, v{GB+2*j}, v14\nv_fma_f32 v15, v{R+2*j+1}, v{GB+2*j+1}, v15\nv_cvt_pk_bf16_f32 v{16+j}, v14, v15")
    e("s_lshl_b32 s28, s22, 15\ns_lshl_b32 s29, s23, 6\ns_add_u32 s28, s28, s29")
    e("v_permlane32_swap_b32 v16, v18\nv_permlane32_swap_b32 v17, v19\nv_permlane32_swap_b32 v20, v22\nv_permlane32_swap_b32 v21, v23")
    e("buffer_store_dwordx4 v[16:19], v10, s[24:27], s28 offen\nbuffer_store_dwordx4 v[20:23], v10, s[24:27], s28 offen offset:32")
    e(f"s_or_b32 s28, s2, s4\ns_cmp_lg_u32 s28, 0\ns_cbranch_scc1 P5E\nv_mov_b32 v12, s96\nv_mov_b32 v13, s97\nv_mov_b32 v14, 0\ns_mov_b32 s28, {WS_NONCE}\nbuffer_store_dwordx2 v[12:13], v14, s[12:15], s28 offen\nP5E:")
```

```python
from pk2 import *
def p4(k,BUD=int(os.environ.get('BUD','24')),APRE=int(os.environ.get('APRE','20')),MI=8):
    e=k.e; T=Trk(k)
    CSL=155648
    slot=lambda j: (131072+j*12288) if j<2 else (j-2)*16384
    ACC=128; BF=[32,48,96]; STT=64
    e("s_and_b32 s27, s4, 1\ns_lshr_b32 s16, s5, 1\ns_lshl_b32 s16, s16, 2\ns_add_u32 s16, s16, s4")
    e(f"s_lshl_b32 s17, s16, 15\ns_add_u32 s17, s17, {WS_Y2}\ns_mul_i32 s31, s4, 3072\ns_add_u32 s30, s41, s31\ns_add_u32 s30, s30, 131072")
    def st2(j):
        return [((f"s_add_u32 m0, s31, {slot(j)}\ns_nop 0\n" if i==0 else "")+f"buffer_load_dwordx4 v2, s[12:15], s30 offen offset:{i*1024} {SC} lds"+(f"\ns_add_u32 s30, s30, 12288" if i==2 else ""),'vm',('s2',j)) for i in range(3)]
    def run(it):
        if isinstance(it,str): e(it)
        elif it[1]=='w': T.wait(it[0],it[2])
        else: T.op(it[1],it[0],it[2])
    for it in st2(0)+st2(1): run(it)
    ks_setup(k,28,WS_HH,WS_WD,112,0,38,36)
    e(f"s_lshl_b32 s20, s40, 11\ns_lshl_b32 s21, s27, 10\ns_add_u32 s20, s20, s21\ns_add_u32 s20, s20, {WS_CS}\ns_add_u32 s22, s21, {CSL}")
    e(f"s_lshl_b32 s21, s16, 12\ns_add_u32 s21, s21, {WS_ST}\nv_lshlrev_b32 v4, 3, v1")
    misc=[(f"s_mov_b32 m0, s22\ns_nop 0\nbuffer_load_dwordx4 v2, s[12:15], s20 offen {SC} lds",'vm','cs')]
    misc+=[(f"buffer_load_dwordx2 {vr(STT+2*i,2)}, v4, s[12:15], s21 offen offset:{i*512} {SC}",'vm','st') for i in range(8)]
    VQ=[]
    for s in range(32):
        if s==MI: VQ+=misc
        VQ.append((f"buffer_load_dwordx4 {vr(4*s,4,'a')}, v2, s[12:15], s17 offen offset:{(s&3)*1024} {SC}"+("\ns_add_u32 s17, s17, 4096" if s&3==3 else ""),'vm',('a',s)))
    for j in range(2,8): VQ+=st2(j)
    for s in range(16): VQ+=[(x,'vm','wd') for x in ld5(128+8*s,'a',36,s)]
    for s in range(16,28): VQ+=[(x,'vm',('w2',2*(s-16)+2)) for x in ld5(8*(s-16),'a',36,s)]
    e(f"v_add_u32 v8, 65536, v2\nv_lshrrev_b32 v5, 5, v1\nv_lshlrev_b32 v17, 4, v5\nv_add_u32 v17, {CSL}, v17")
    e(f"s_mul_i32 s33, s16, {112*1024}\ns_mul_i32 s34, s40, 7168\ns_add_u32 s33, s33, s34\ns_add_u32 s33, s33, {WS_HH}\ns_add_u32 s34, s33, 4096")
    e("v_and_b32 v12, 15, v1\nv_lshlrev_b32 v12, 3, v12\ns_lshr_b32 s28, s5, 1\ns_lshl_b32 s28, s28, 7\nv_add_u32 v12, s28, v12")
    st(k,'p4pre')
    e("v_and_b32 v13, 15, v1\nv_min_u32 v14, 13, v13\nv_lshlrev_b32 v14, 3, v14\nv_add_u32 v14, s6, v14\ns_mul_i32 s28, s40, 7\ns_lshr_b32 s28, s28, 1\nv_min_u32 v13, 3, v13\nv_add_u32 v13, s28, v13\nv_bfe_u32 v15, v1, 4, 1\nv_mul_u32_u24 v15, 56, v15\nv_add3_u32 v13, v13, v15, 56\nv_add_u32 v13, 56, v13\nv_cmp_gt_u32 vcc, 32, v1\ns_nop 1\nv_cndmask_b32 v13, v14, v13, vcc\nv_lshlrev_b32 v13, 3, v13")
    poll(k,[(12,WS_FL+F3*2048,0),(13,WS_FL+FB*2048,0)],one=True); T.done['vm']=len(T.q['vm'])
    st(k,'f3ok')
    for _ in range(APRE): run(VQ.pop(0))
    MU,SG,AA=18,19,20
    stats=[('vm','w','st')]
    for i in range(1,8): stats+=[f"v_add_f32 v{STT}, v{STT}, v{STT+2*i}",f"v_add_f32 v{STT+1}, v{STT+1}, v{STT+2*i+1}"]
    stats+=[f"v_mov_b32 v{STT+2}, v{STT}",f"v_mov_b32 v{STT+3}, v{STT+1}","s_nop 1",f"v_permlane32_swap_b32 v{STT}, v{STT+2}",f"v_permlane32_swap_b32 v{STT+1}, v{STT+3}",
        f"v_add_f32 v{STT}, v{STT}, v{STT+2}",f"v_add_f32 v{STT+1}, v{STT+1}, v{STT+3}",
        f"v_mul_f32 v{MU}, {f2u(1/512)}, v{STT}",f"v_mul_f32 v{STT+1}, {f2u(1/512)}, v{STT+1}",f"v_fma_f32 v{STT+1}, -v{MU}, v{MU}, v{STT+1}",f"v_max_f32 v{STT+1}, 0, v{STT+1}",
        f"v_add_f32 v{STT+1}, {f2u(1e-5)}, v{STT+1}",f"v_rsq_f32 v{AA}, v{STT+1}","s_nop 0",f"v_mul_f32 v{SG}, v{AA}, v{STT+1}",f"v_mul_f32 v{AA}, {f2u(-1.4426950408889634)}, v{AA}"]
    def coef(b,m):
        return [(f"ds_read_b128 {vr(64+16*m+8*a+4*q,4)}, v17 offset:{(2*m+a)*512+b*64+q*32}",'lg',('co',b,m)) for a in range(2) for q in range(2)]
    def corr(b,m,ini,nxt):
        L=[('lg','w',('co',b,m))]
        for r in range(8):
            d=ACC+16*b+8*m+r
            L+=[f"v_mul_f32 v{d}, v{72+16*m+r}, v{SG}" if ini else f"v_fma_f32 v{d}, v{72+16*m+r}, v{SG}, v{d}",f"v_fma_f32 v{d}, -v{MU}, v{64+16*m+r}, v{d}"]
        if nxt is not None: L+=coef(nxt,m)
        return L
    def init(b,nxt): return corr(b,0,1,nxt)+corr(b,1,1,nxt)
    def epi(b,cr,nxt=None):
        L=[]; D=ACC+16*b
        if cr: L=corr(b,0,0,nxt)+corr(b,1,0,nxt)
        L+=[f"v_mul_f32 v{D+r}, v{D+r}, v{AA}" for r in range(8)]
        L+=[f"v_exp_f32 v{D+r}, v{D+r}" for r in range(8)]
        L+=[f"v_fma_f32 v{D+r}, v{D+r}, v{SG}, v{SG}" for r in range(8)]
        L+=[f"v_rcp_f32 v{D+r}, v{D+r}" for r in range(8)]
        L+=[f"v_mul_f32 v{D+r}, v{D+r}, v{D+8+r}" for r in range(8)]
        L+=[f"v_cvt_pk_bf16_f32 v{D+8+j}, v{D+2*j}, v{D+2*j+1}" for j in range(4)]
        L+=[(f"buffer_store_dwordx4 {vr(D+8,4)}, v2, s[12:15], s{33+b//4} offen offset:{(b&3)*1024} {SC}",'vm','o')]
        return L
    cost=lambda it: (8 if isinstance(it,str) and (it.startswith('v_exp') or it.startswith('v_rcp')) else 4) if isinstance(it,str) or it[1]!='vm' else 16
    def reads(p,s):
        L=[]; b0=BF[(s+32*p)%3]
        if p==0:
            for b in range(4): L.append((f"ds_read_b128 {vr(b0+4*b,4)}, v{2 if s<16 else 8} offset:{(s*4096+b*1024)&65535}",'lg',('b',p,s,b)))
        else:
            if s&3==0: L.append(f"v_add_u32 v16, {slot(s>>2)}, v2")
            for b in range(3): L.append((f"ds_read_b128 {vr(b0+4*b,4)}, v16 offset:{(s&3)*3072+b*1024}",'lg',('b',p,s,b)))
        return L
    for it in reads(0,0)+reads(0,1): run(it)
    steps=[(0,s) for s in range(32)]+[(1,s) for s in range(32)]
    fill=[]; nm=0
    for idx,(p,s) in enumerate(steps):
        nb=4 if p==0 else 3
        if p==0 and s==MI+3: fill+=coef(4,1)+stats+coef(4,0)+init(4,5)+init(5,6)+init(6,0)
        if p==1 and s==0:
            for it in fill: run(it)
            e("s_nop 1")
            fill=[]
        if p==1 and s==1: fill+=epi(0,1,1)+epi(1,1,2)+epi(2,1,3)+epi(3,1)
        rd=[]
        if idx+2<64:
            p2,s2=steps[idx+2]
            if s2&3==0:
                if p2==1:
                    tg=('s2',s2>>2)
                    while any(x[2]==tg for x in VQ): run(VQ.pop(0))
                    T.wait('vm',tg)
                e("s_barrier")
            rd=reads(p2,s2)
        if p==0:
            while any(x[2]==('a',s) for x in VQ): run(VQ.pop(0))
            T.wait('vm',('a',s))
        if idx in (0,16,32,48): st(k,f'p4_{idx}')
        for b in range(nb):
            if b==0: T.wait('lg',('b',p,s,nb-1))
            d=vr(ACC+16*(b+4*p),16)
            e(f"v_mfma_f32_32x32x16_bf16 {d}, {vr(BF[idx%3]+4*b,4)}, {vr(4*s,4,'a')}, {'0' if (s==0 and p==0) else d}")
            bud=BUD; nm+=1; n=0
            while rd and (n<1 or b==nb-1 or isinstance(rd[0],str)):
                it=rd.pop(0); run(it); bud-=8; n+=0 if isinstance(it,str) else 1
            if VQ and nm%2==0:
                for qi,q in enumerate(VQ):
                    tg=q[2]
                    if isinstance(tg,tuple) and tg[0]=='s2' and p==0 and (s>>2)<tg[1]: continue
                    if isinstance(tg,tuple) and tg[0]=='w2' and not (p==1 and s>=tg[1]): continue
                    run(VQ.pop(qi)); bud-=8; break
            while fill and bud>=cost(fill[0]):
                it=fill.pop(0); run(it); bud-=cost(it)
    for it in VQ: run(it)
    st(k,'p4mm')
    for it in fill: run(it)
    T.wait('vm','o'); e("s_barrier"); flag(k,F4A,'s7'); e("s_nop 9")
    for b in range(4,7):
        for it in epi(b,0): run(it)
    st(k,'p4end')
    e(f"s_mov_b32 s98, {WS_FL+F4A*2048}\nbuffer_load_dwordx2 v[14:15], v12, s[12:15], s98 offen {SC}")
    publish(k,F4)
def main():
    k=Kern(NAME+"_kernel",256,256,163840,256,256); e=k.e
    e("s_cmp_ge_u32 s2, 256\ns_cbranch_scc1 PK_END")
    stamp(k,14,True); stamp(k,0)
    def ja(T): job_issue(k,'A',JB); T.log('vm','j',4)
    p1(k,ja)
    p2(k,lambda T: b_issue(k,T),lambda: p3_pref(k))
    p3(k); p4(k); p5(k)
    if os.environ.get('DBGOUT'):
        e("s_or_b32 s28, s2, s4\ns_cmp_lg_u32 s28, 0x45\ns_cbranch_scc1 PK_END"); k.srds([('dbg',24)])
        e("s_waitcnt vmcnt(0)\ns_memrealtime s[94:95]\ns_waitcnt lgkmcnt(0)\nv_mov_b32 v0, 0\ns_sub_u32 s94, s94, s92")
        for i in range(1,16):
            if i<14: e(f"s_sub_u32 s{64+2*i}, s{64+2*i}, s64")
            e(f"v_mov_b32 v1, s{64+2*i}\nbuffer_store_dword v1, v0, s[24:27], 0 offen offset:{4*i}")
    else: stamp_out(k,0)
    e("PK_END:\ns_endpgm")
    p2_cold(k)
    return k
if __name__=='__main__':
    import sys
    k=main()
    s=build([k]).replace(f"; @launch kernel={k.name} grid","; @launch grid").replace("next_free_sgpr 96","next_free_sgpr 102")
    open(sys.argv[1] if len(sys.argv)>1 else f"cdna_kernels/{NAME}.s","w").write(s)
```

```python
from common import *
import re
WS_FL=0x90000; WS_NONCE=WS_FL+0x8000; WS_MP=0xA0000
FM,F1,FA,F2,FB,F3,F4,F4A,FC=range(9)
SC="sc1"
QSCALE=0.25*1.4426950408889634
LNW=int(os.environ.get('LNW','0'))
CT=int(os.environ.get('CT','1'))
JAS=int(os.environ.get('JAS','0')); JAF=int(os.environ.get('JAF','23'))
PFS=int(os.environ.get('PFS','6'))
uid=[0]; PFR=int(os.environ.get('PFR','5'))
MAP=int(os.environ.get('MAP','0')); PFM=int(os.environ.get('PFM','5'))
def publish(k,ph,idx='s7',drain=True):
    e=k.e; uid[0]+=1
    e("s_waitcnt vmcnt(0)"); st(k,f"dr{ph}"); e("s_barrier"); flag(k,ph,idx)
def flag(k,ph,idx):
    e=k.e; uid[0]+=1
    e(f"s_cmp_lg_u32 s4, 0\ns_cbranch_scc1 PB{uid[0]}")
    e(f"s_lshl_b32 s98, {idx}, 3\ns_add_u32 s98, s98, {WS_FL+ph*2048}\nv_mov_b32 v252, s96\nv_mov_b32 v253, s97\nv_mov_b32 v254, 0\ns_mov_b64 exec, 1\nbuffer_store_dwordx2 v[252:253], v254, s[12:15], s98 offen {SC}\ns_mov_b64 exec, -1\nPB{uid[0]}:")
SL=int(os.environ.get('SL','4')); SLG=int(os.environ.get('SLG','8'))
def poll(k,items,r0=240,gran=False,one=False):
    e=k.e; uid[0]+=1; u=uid[0]
    if one: e(f"s_cmp_lg_u32 s4, 0\ns_cbranch_scc1 PD{u}")
    e(f"s_mov_b32 s99, 0\nPL{u}:")
    r=r0; regs=[]
    for va,so,wide in items:
        n=4 if wide else 2
        e(f"s_mov_b32 s98, {so}\nbuffer_load_dwordx{n} {vr(r,n)}, v{va}, s[12:15], s98 offen {SC}")
        regs+=[r+2] if gran else [r+2*i for i in range(n//2)]; r+=4
    e("s_add_u32 s99, s99, 1\ns_waitcnt vmcnt(0)")
    for i,q in enumerate(regs):
        e(f"v_cmp_ne_u64 {'vcc' if i==0 else 's[100:101]'}, s[96:97], {vr(q,2)}")
        if i: e("s_or_b64 vcc, vcc, s[100:101]")
    e(f"s_cmp_eq_u64 vcc, 0\ns_cbranch_scc1 PD{u}\ns_sleep {SLG if gran else SL}\ns_cmp_lt_u32 s99, 50000\ns_cbranch_scc1 PL{u}\nPD{u}:")
    if one: e("s_waitcnt vmcnt(0)\ns_barrier")
def allflags(ph): return [(2,WS_FL+ph*2048,1),(2,WS_FL+ph*2048+1024,1)]
JB=139264
WR=65536
def p1(k,jobA_issue):
    e=k.e; T=Trk(k)
    k.srds([('ws',12),('x',8),('c',16),('wm',20),('wqkv',24)])
    lane_setup(k,1,4)
    if CT:
        e("s_cmp_ge_u32 s2, 16\ns_cbranch_scc1 PK_FIRST\ns_getpc_b64 s[38:39]\ns_lshr_b32 s30, s2, 3\ns_lshl_b32 s30, s30, 2\ns_add_u32 s30, s30, s4\ns_lshl_b32 s30, s30, 13\nv_lshlrev_b32 v10, 7, v1\nv_add_u32 v10, s30, v10\nv_min_u32 v10, PK_LAST-PK_FIRST, v10\nv_mov_b32 v11, s39\nv_add_co_u32 v10, vcc, s38, v10\nv_addc_co_u32 v11, vcc, 0, v11, vcc\nglobal_load_dword v63, v[10:11], off\nPK_FIRST:")
    if MAP==0:
        e("s_and_b32 s5, s2, 6\ns_lshl_b32 s5, s5, 2\ns_lshr_b32 s6, s2, 5\ns_add_u32 s5, s5, s6")
        e("s_and_b32 s6, s2, 1\ns_lshl_b32 s6, s6, 2\ns_bfe_u32 s7, s2, 0x20003\ns_add_u32 s6, s6, s7")
    else:
        e("s_and_b32 s5, s2, 7\ns_lshl_b32 s5, s5, 2\ns_lshr_b32 s6, s2, 6\ns_add_u32 s5, s5, s6\ns_bfe_u32 s6, s2, 0x30003")
    e("s_lshl_b32 s7, s5, 3\ns_add_u32 s7, s7, s6")
    e("v_lshlrev_b32 v2, 4, v1\nv_lshrrev_b32 v3, 3, v1\nv_and_b32 v4, 7, v1\nv_lshlrev_b32 v4, 4, v4")
    e("s_movk_i32 s28, 6144\nv_mul_lo_u32 v5, v3, s28\nv_add_u32 v5, v5, v4\nv_lshlrev_b32 v6, 1, v3")
    e("s_and_b32 s29, s2, 3\ns_lshl_b32 s29, s29, 2\ns_add_u32 s29, s29, s4\ns_lshl_b32 s30, s29, 6\ns_mul_i32 s29, s29, 196608\ns_lshr_b32 s31, s2, 2\ns_lshl_b32 s31, s31, 7\ns_add_u32 s29, s29, s31")
    e("s_cmp_lt_u32 s2, 192\ns_cselect_b32 s29, s29, 0x7f000000")
    e("s_lshl_b32 s32, s5, 16\ns_lshl_b32 s33, s4, 14\ns_add_u32 s32, s32, s33")
    e("v_and_b32 v7, 16, v1\nv_lshlrev_b32 v7, 2, v7\nv_xor_b32 v7, v7, v4\nv_mul_u32_u24 v8, 3072, v3\nv_add_u32 v7, v7, v8")
    e(f"s_mul_i32 s34, s4, {8*3072}\ns_lshl_b32 s35, s6, 7\ns_add_u32 s34, s34, s35\ns_lshr_b32 s35, s4, 1\ns_mul_i32 s35, s35, 6144\ns_and_b32 s36, s4, 1\ns_lshl_b32 s36, s36, 10\ns_add_u32 s35, s35, s36\ns_add_u32 s35, s35, {WR}")
    e(f"s_waitcnt lgkmcnt(0)\ns_load_dwordx2 s[96:97], s[12:13], {WS_NONCE}")
    for i in range(4): T.op('vm',f"buffer_load_dwordx4 {vr(16+4*i,4)}, v5, s[20:23], s29 offen\ns_add_u32 s29, s29, 49152",'m')
    for i in range(4): T.op('vm',f"buffer_load_ushort v{12+i}, v6, s[16:19], s30 offen offset:{16*i}",'m')
    X=192; st(k,"karg")
    for i in range(16): e(f"buffer_load_dwordx4 {vr(X+4*i,4)}, v2, s[8:11], s32 offen offset:{(i&3)*1024}"+("\ns_add_u32 s32, s32, 4096" if i&3==3 else ""))
    def wst(g):
        return [(f"s_add_u32 m0, s35, {(g%6)*12288+p*2048}\ns_add_u32 s37, s34, {p*1024}\nbuffer_load_dwordx4 v7, s[24:27], s37 offen lds"+(f"\ns_add_u32 s34, s34, {32*3072}" if p==2 else ""),('w',g)) for p in range(3)]
    WQ_=[]
    for g in range(16): WQ_+=wst(g)
    def issue(n):
        for _ in range(n):
            if WQ_:
                x,g=WQ_.pop(0); T.op('vm',x,g)
    nt=1
    pfi="buffer_load_dword v62, v9, s[40:43], s44 offen"
    if PFM==1: e(pfi)
    elif PFM>=2: e(f"v_mul_u32_u24 v10, 3072, v1\ns_and_b32 s45, s5, 7\ns_mul_i32 s45, s45, {64*3072}\ns_lshl_b32 s33, s6, 7\ns_add_u32 s45, s45, s33\ns_min_u32 s33, s4, 2\ns_lshl_b32 s33, s33, 10\ns_add_u32 s45, s45, s33\nbuffer_load_dword v62, v10, s[24:27], s45 offen")
    else: nt=0
    if PFM==4: e(pfi); nt+=1
    if JAS==-2: jobA_issue(T); nt+=4
    e(f"s_waitcnt vmcnt({16+nt})")
    st(k,"mdata")
    for i in range(8): e(f"v_mov_b32 v{32+i}, 0")
    for i in range(4):
        r=12+i
        e(f"v_lshlrev_b32 v{r}, 16, v{r}\nv_mul_f32 v10, {f2u(-1.4426950408889634)}, v{r}\nv_exp_f32 v10, v10\ns_nop 0\nv_add_f32 v10, 1.0, v10\nv_rcp_f32 v10, v10\ns_nop 0\nv_mul_f32 v{r}, v{r}, v10\nv_cvt_pk_bf16_f32 v{r}, v{r}, v{r}\nv_lshlrev_b32 v{r}, 16, v{r}")
        for j in range(4):
            unpack(k,10,16+4*i+j)
            e(f"v_fmac_f32 v{32+2*j}, v10, v{r}\nv_fmac_f32 v{33+2*j}, v11, v{r}")
    e("s_lshl_b32 s30, s4, 11\nv_lshlrev_b32 v10, 8, v3\nv_lshl_add_u32 v10, v4, 1, v10\nv_add_u32 v10, s30, v10\nds_write_b128 v10, v[32:35]\nds_write_b128 v10, v[36:39] offset:16")
    e("s_waitcnt lgkmcnt(0)\ns_add_u32 s96, s96, 1\ns_addc_u32 s97, s97, 0\ns_barrier\ns_cmp_lg_u32 s4, 0\ns_cbranch_scc1 P0_A\ns_cmp_ge_u32 s2, 192\ns_cbranch_scc1 P0_A")
    e("v_and_b32 v10, 31, v1\nv_lshrrev_b32 v11, 5, v1\nv_lshlrev_b32 v11, 12, v11\nv_lshl_add_u32 v11, v10, 3, v11\nv_lshlrev_b32 v10, 4, v10")
    for j in range(16): e(f"ds_read_b64 {vr(16+2*j,2)}, v11 offset:{j*256}")
    e(f"s_and_b32 s29, s2, 3\ns_mul_i32 s29, s29, 24576\ns_lshl_b32 s30, s31, 2\ns_add_u32 s29, s29, s30\ns_add_u32 s29, s29, {WS_MP}\ns_waitcnt lgkmcnt(0)")
    for sz in (16,8,4,2):
        for j in range(sz): e(f"v_add_f32 v{16+j}, v{16+j}, v{16+j+sz}")
    e(f"v_mov_b32 v18, v16\nv_mov_b32 v19, v17\ns_nop 1\nv_permlane32_swap_b32 v16, v18\nv_permlane32_swap_b32 v17, v19\nv_add_f32 v56, v16, v18\nv_add_f32 v57, v17, v19\nv_mov_b32 v58, s96\nv_mov_b32 v59, s97\nbuffer_store_dwordx4 v[56:59], v10, s[12:15], s29 offen {SC}\nP0_A:")
    st(k,'modpub')
    if LNW==2: issue(18); nt+=18
    if PFM==2: e(pfi); nt+=1
    for i in range(16):
        e(f"s_waitcnt vmcnt({nt+15-i+(i if LNW==1 else 0)})")
        if i in (0,8): st(k,f"x{i}")
        for j in range(4):
            d=64+8*i+2*j
            unpack(k,d,X+4*i+j)
            if j==0: e(f"v_pk_mul_f32 v[50:51], {vr(d,2)}, {vr(d,2)}")
            else: e(f"v_pk_add_f32 v[48:49], {vr(d-2,2) if j==1 else 'v[48:49]'}, {vr(d,2)}\nv_pk_fma_f32 v[50:51], {vr(d,2)}, {vr(d,2)}, v[50:51]")
        e(f"v_add_f32 v{16+i}, v48, v49\nv_add_f32 v{32+i}, v50, v51")
        if LNW==1: issue(1)
    if LNW==1: issue(2)
    st(k,"lnsum")
    e("s_nop 1")
    for b in (16,32):
        for i in range(8): e(f"v_permlane32_swap_b32 v{b+i}, v{b+i+8}")
        for i in range(8): e(f"v_add_f32 v{b+i}, v{b+i}, v{b+i+8}")
    for b in (16,32):
        for i in range(4): e(f"v_permlane16_swap_b32 v{b+i}, v{b+i+4}")
    for b in (16,32):
        for i in range(4): e(f"v_add_f32 v{b+i}, v{b+i}, v{b+i+4}")
    for rot in (8,4,2,1):
        for b in (16,32):
            for i in range(4): e(f"v_add_f32_dpp v{b+i}, v{b+i}, v{b+i} row_ror:{rot} row_mask:0xf bank_mask:0xf")
    for i in range(4):
        e(f"v_mul_f32 v{16+i}, {f2u(1/512)}, v{16+i}\nv_mul_f32 v{32+i}, {f2u(1/512)}, v{32+i}\nv_fma_f32 v{32+i}, -v{16+i}, v{16+i}, v{32+i}\nv_max_f32 v{32+i}, 0, v{32+i}\nv_add_f32 v{32+i}, {f2u(1e-5)}, v{32+i}\nv_rsq_f32 v{32+i}, v{32+i}\ns_nop 0\nv_mul_f32 v{16+i}, v{16+i}, v{32+i}")
    e("s_nop 1")
    for i in range(16):
        q=((i>>2)&1)+2*(i>>3)
        e(f"v_readlane_b32 s{41+(i&1)*2}, v{16+(i&3)}, {16*q}\nv_readlane_b32 s{40+(i&1)*2}, v{32+(i&3)}, {16*q}\ns_nop 0\nv_mov_b32 v48, s{41+(i&1)*2}")
        for j in range(4): e(f"v_pk_fma_f32 {vr(64+8*i+2*j,2)}, {vr(64+8*i+2*j,2)}, {sr(40+(i&1)*2,2)}, v[48:49] op_sel_hi:[1,0,0] neg_lo:[0,0,1] neg_hi:[0,0,1]")
    e("v_and_b32 v10, 7, v1\ns_and_b32 s30, s4, 1\ns_lshl_b32 s30, s30, 8\ns_lshr_b32 s31, s4, 1\ns_lshl_b32 s31, s31, 15\ns_add_u32 s30, s30, s31\nv_lshlrev_b32 v10, 4, v10\nv_lshl_add_u32 v10, v1, 9, v10\nv_add_u32 v10, s30, v10")
    e("v_lshrrev_b32 v11, 5, v1\nv_and_b32 v12, 31, v1\nv_xor_b32 v12, v12, v11\nv_lshlrev_b32 v12, 4, v12\nv_lshl_add_u32 v12, v11, 9, v12\nv_add_u32 v12, s31, v12")
    for i in range(1,4): e(f"v_xor_b32 v{12+i}, {32*i}, v12")
    e("v_bfe_u32 v8, v1, 2, 2\nv_lshl_add_u32 v8, v11, 3, v8\nv_lshlrev_b32 v8, 7, v8\nv_and_b32 v9, 3, v1\nv_lshl_add_u32 v8, v9, 3, v8\nv_bfe_u32 v9, v1, 4, 1\nv_lshl_add_u32 v8, v9, 5, v8")
    e(f"v_bfe_u32 v9, v1, 3, 1\ns_and_b32 s30, s4, 1\nv_xor_b32 v9, s30, v9\nv_lshl_add_u32 v8, v9, 6, v8\nv_add_u32 v8, {WR}, v8\nv_add_u32 v9, 36864, v8\ns_lshl_b32 s30, s4, 10\nv_add_u32 v6, s30, v2\nv_lshlrev_b32 v5, 5, v1\nv_add_u32 v5, 155648, v5")
    st(k,'lndone')
    if LNW==0: issue(18)
    if PFM==3: e(pfi.replace('v9,','v61,').replace('s[40:43]','s[52:55]'))
    if JAS==-1: jobA_issue(T)
    st(k,'wiss')
    modfin(k)
    poll(k,[(6,WS_MP+q*24576+a*4096,1) for a in range(2) for q in range(4)],192,True); T.done['vm']=len(T.q['vm'])
    st(k,'modok')
    for a in range(2):
        for x in range(2):
            r=192+16*a+x
            e(f"v_add_f32 v{r}, v{r}, v{r+4}\nv_add_f32 v{r+8}, v{r+8}, v{r+12}\nv_add_f32 v{16+2*a+x}, v{r}, v{r+8}")
        e(f"v_cvt_pk_bf16_f32 v11, v{16+2*a}, v{17+2*a}"); unpack(k,16+2*a,11)
    e("v_add_f32 v18, 1.0, v18\nv_add_f32 v19, 1.0, v19\nv_cvt_pk_bf16_f32 v11, v18, v19"); unpack(k,18,11)
    e("v_lshrrev_b32 v6, 1, v6\nv_add_u32 v6, 155648, v6\nds_write_b64 v6, v[16:17]\nds_write_b64 v6, v[18:19] offset:2048\ns_waitcnt lgkmcnt(0)\ns_barrier")
    for a in range(2):
        for hf in range(2): e(f"ds_read_b128 {vr(16+8*a+4*hf,4)}, v5 offset:{a*2048+hf*16}")
    e("s_waitcnt lgkmcnt(0)")
    for i in range(16):
        for j in range(4): e(f"v_pk_fma_f32 {vr(64+8*i+2*j,2)}, {vr(64+8*i+2*j,2)}, {vr(24+2*j,2)}, {vr(16+2*j,2)}")
        for j in range(4): e(f"v_cvt_pk_bf16_f32 v{64+8*i+j}, v{64+8*i+2*j}, v{64+8*i+2*j+1}")
        e(f"v_xor_b32 v11, {(i&7)*16}, v10\nds_write_b128 v11, {vr(64+8*i,4)} offset:{(i>>3)*128}")
    e("s_waitcnt lgkmcnt(0)\ns_barrier")
    st(k,'hready')
    ACC=64; FR=16
    def rd(s):
        f=FR+16*(s%3); o=(s%12)*6144; va=8 if o<36864 else 9; o%=36864
        L=[f"ds_read_b128 {vr(f,4)}, v{12+(s&3)} offset:{s*1024}"]
        for p in range(3): L+=[f"ds_read_b64_tr_b16 {vr(f+4+4*p+2*x,2)}, v{va} offset:{o+p*2048+x*512}" for x in range(2)]
        return L
    for s in range(2):
        for x in rd(s): T.op('lg',x,('b',s))
    for s in range(32):
        if s+2<32 and s%2==0 and s>0:
            g=(s+2)//2
            if g>=6: T.wait('vm',('w',g))
            e("s_barrier")
        if s==JAF:
            T.wait('vm','j'); job_finish(k,'A',112); T.log('vm','js',4); T.done['lg']=len(T.q['lg'])
        L=rd(s+2) if s+2<32 else []
        T.wait('lg',('b',s))
        f=FR+16*(s%3)
        for p in range(3):
            b=vr(f+4+4*p,4); h=vr(f,4); d=vr(ACC+16*p,16); c='0' if s==0 else d
            e(f"v_mfma_f32_32x32x16_bf16 {d}, {b}, {h}, {c}" if p<2 else f"v_mfma_f32_32x32x16_bf16 {d}, {h}, {b}, {c}")
            for _ in range(3 if p==0 else 2):
                if L: T.op('lg',L.pop(0),('b',s+2))
            if s>=2 and s%2==0: issue(1)
            if s==JAS and p==2: jobA_issue(T); T.done['lg']=len(T.q['lg'])
    st(k,"gemm1")
    e("s_lshl_b32 s16, s5, 1\ns_lshr_b32 s17, s4, 1\ns_add_u32 s16, s16, s17\ns_lshl_b32 s17, s6, 1\ns_and_b32 s18, s4, 1\ns_add_u32 s17, s17, s18")
    e(f"s_lshl_b32 s17, s17, 17\ns_lshl_b32 s18, s16, 10\ns_add_u32 s17, s17, s18\ns_add_u32 s19, s17, s18\ns_add_u32 s19, s19, {WS_V}\ns_mov_b32 s22, {f2u(QSCALE)}\ns_nop 1")
    e("s_and_b32 s30, s4, 1\ns_lshl_b32 s30, s30, 12\ns_lshr_b32 s31, s4, 1\ns_lshl_b32 s31, s31, 10\ns_add_u32 s30, s30, s31\ns_add_u32 s30, s30, 155648\nv_add_u32 v40, s30, v2")
    for p in (1,2,0):
        if p==0:
            for r in range(16): e(f"v_mul_f32 v{ACC+r}, s22, v{ACC+r}")
        for hh in range(2):
            d=16+(2*p+hh)*4
            for j in range(4): e(f"v_cvt_pk_bf16_f32 v{d+j}, v{ACC+16*p+8*hh+2*j}, v{ACC+16*p+8*hh+2*j+1}")
            if p==0: e(f"ds_write_b128 v40, {vr(d,4)} offset:{hh*2048}")
            elif p<2: e(f"s_add_u32 s20, s17, {(WS_Q,WS_K)[p]+hh*65536}\nbuffer_store_dwordx4 {vr(d,4)}, v2, s[12:15], s20 offen {SC}")
            else: e(f"buffer_store_dwordx4 {vr(d,4)}, v2, s[12:15], s19 offen offset:{hh*1024} {SC}")
    st(k,'p1end')
    p2_setup(k)
    e('s_waitcnt lgkmcnt(0)')
    publish(k,F1); flag(k,FA,'s2')

def job_issue(k,rnd,jb):
    e=lambda x: k.e(x.replace('v60','v172').replace('v61','v173').replace('v62','v174') if rnd=='A' and JAS>=0 else x.replace('v62','v59'))
    e(f"v_lshrrev_b32 v60, 3, v1\nv_and_b32 v61, 7, v1\nv_lshlrev_b32 v61, 4, v61\nv_and_b32 v62, 16, v1\nv_lshlrev_b32 v62, 2, v62\nv_xor_b32 v61, v61, v62\ns_lshl_b32 s56, s4, 12\ns_add_u32 s56, s56, {jb}")
    if rnd=='A':
        e("s_cmp_ge_u32 s2, 224\ns_cbranch_scc1 JI_A1")
        k.srds([('wg',48),('wu',52)])
        e("s_lshr_b32 s57, s2, 3\ns_and_b32 s58, s2, 7\ns_lshl_b32 s58, s58, 2\ns_add_u32 s58, s58, s4")
        e(f"v_mul_u32_u24 v60, 3584, v60\nv_xor_b32 v62, 32, v61\nv_add_u32 v62, v60, v62\nv_add_u32 v60, v60, v61\ns_mul_i32 s59, s58, {16*3584}\ns_lshl_b32 s60, s57, 7\ns_add_u32 s59, s59, s60\ns_add_u32 s60, s59, {8*3584}\ns_waitcnt lgkmcnt(0)")
        for m in range(2):
            for hf in range(2): e(f"s_add_u32 m0, s56, {m*2048+hf*1024}\ns_nop 0\nbuffer_load_dwordx4 v{60+2*m}, {sr(48+4*m,4)}, s{59+hf} offen lds")
        for b in range(4):
            e(f"s_lshl_b32 s59, s57, 2\ns_add_u32 s59, s59, {b}\ns_mul_i32 s60, s59, 9363\ns_lshr_b32 s60, s60, 16\ns_mul_i32 s61, s60, 7\ns_sub_u32 s59, s59, s61")
            e(f"s_lshl_b32 s61, s58, 2\ns_mul_i32 s62, s58, 3\ns_add_u32 s62, s62, 124\ns_cmp_lt_u32 s59, 4\ns_cselect_b32 s61, s61, s62\ns_add_u32 s61, s61, s59\ns_mul_i32 s60, s60, 224\ns_add_u32 s61, s61, s60\ns_lshl_b32 s61, s61, 10\ns_add_u32 s{44+b}, s61, {WS_WGU}")
        e("s_branch JI_A2\nJI_A1:")
    else: e("s_cmp_ge_u32 s2, 112\ns_cbranch_scc1 JI_B2")
    nm,base,blk,sub=(('wo',WS_WO,32768,224) if rnd=='A' else ('wd',WS_WD,114688,0))
    k.srds([(nm,48)])
    e(f"s_sub_u32 s57, s2, {sub}\ns_and_b32 s58, s57, 7\ns_lshr_b32 s57, s57, 3\ns_lshl_b32 s57, s57, 3\ns_lshl_b32 s59, s4, 1\ns_add_u32 s57, s57, s59")
    e(f"s_mul_i32 s44, s58, {2*blk}\ns_lshl_b32 s59, s57, 10\ns_add_u32 s44, s44, s59\ns_add_u32 s44, s44, {base}\ns_add_u32 s45, s44, {blk}\ns_add_u32 s46, s44, 1024\ns_add_u32 s47, s45, 1024")
    e("s_lshl_b32 s59, s57, 14\ns_lshl_b32 s60, s58, 7\ns_add_u32 s59, s59, s60\nv_lshl_add_u32 v60, v60, 10, v61\ns_waitcnt lgkmcnt(0)")
    for i in range(4): e(f"s_add_u32 m0, s56, {i*1024}\ns_nop 0\nbuffer_load_dwordx4 v60, s[48:51], s59 offen lds\ns_add_u32 s59, s59, 8192")
    e(f"JI_{rnd}2:")
def job_finish(k,rnd,sh=0):
    e=lambda x: k.e(re.sub(r'\bv\[?(\d+)(:(\d+)\])?',lambda m: m.group(0) if int(m.group(1))<16 else (f'v[{int(m.group(1))+sh}:{int(m.group(3))+sh}]' if m.group(2) else f'v{int(m.group(1))+sh}'),x))
    if rnd=='B': e("s_cmp_ge_u32 s2, 112\ns_cbranch_scc1 JF_B9")
    e("v_lshrrev_b32 v36, 5, v1\nv_bfe_u32 v37, v1, 2, 2\nv_bfe_u32 v38, v1, 4, 1\nv_and_b32 v39, 3, v1\nv_bfe_u32 v40, v1, 3, 1")
    e("v_lshlrev_b32 v32, 7, v37\nv_lshl_add_u32 v32, v39, 3, v32\nv_lshl_add_u32 v32, v38, 5, v32\nv_lshl_add_u32 v32, v40, 6, v32\nv_lshl_add_u32 v32, v36, 9, v32\nv_add_u32 v32, s56, v32")
    e("v_xor_b32 v33, 64, v32\nv_add_u32 v34, 2048, v32\nv_add_u32 v35, 2048, v33")
    if rnd=='A':
        e("s_cmp_ge_u32 s2, 224\ns_cbranch_scc1 JF_A1\nv_lshl_add_u32 v32, v38, 11, v32\nv_xor_b32 v33, 32, v32\nv_xor_b32 v34, 64, v32\nv_xor_b32 v35, 96, v32\nJF_A1:")
    for b in range(4): e(f"ds_read_b64_tr_b16 {vr(16+4*b,2)}, v{32+b}\nds_read_b64_tr_b16 {vr(18+4*b,2)}, v{32+b} offset:1024")
    e("s_waitcnt lgkmcnt(0)")
    for b in range(4): e(f"buffer_store_dwordx4 {vr(16+4*b,4)}, v2, s[12:15], s{44+b} offen {SC}")
    if rnd=='B': e("JF_B9:")
def modfin(k):
    e=k.e
    e("s_cmp_lt_u32 s2, 224\ns_cbranch_scc1 MF9\ns_cmp_lg_u32 s4, 0\ns_cbranch_scc1 MF9")
    e("s_sub_u32 s30, s2, 208\nv_and_b32 v36, 31, v1\nv_lshlrev_b32 v36, 4, v36\ns_lshl_b32 s31, s30, 9\nv_add_u32 v36, s31, v36")
    poll(k,[(36,WS_MP+q*24576,1) for q in range(4)],40,True)
    e("s_lshr_b32 s30, s30, 3\ns_cmp_eq_u32 s30, 4\ns_cselect_b32 s30, 1.0, 0\nv_lshrrev_b32 v36, 1, v36")
    for x in range(2): e(f"v_add_f32 v{40+x}, v{40+x}, v{44+x}\nv_add_f32 v{48+x}, v{48+x}, v{52+x}\nv_add_f32 v{38+x}, v{40+x}, v{48+x}")
    e("v_cvt_pk_bf16_f32 v37, v38, v39"); unpack(k,38,37)
    e("v_add_f32 v38, s30, v38\nv_add_f32 v39, s30, v39\nv_cvt_pk_bf16_f32 v37, v38, v39"); unpack(k,38,37)
    e(f"buffer_store_dwordx2 v[38:39], v36, s[12:15], 0 offen {SC}\nMF9:")
def p2_setup(k):
    e=k.e; MK=240
    e("v_mov_b32 v8, 0x3f803f80")
    for r in range(48,128): e(f"v_accvgpr_write_b32 a{r}, v8")
    e("v_and_b32 v8, 31, v1\nv_lshrrev_b32 v9, 5, v1\nv_lshlrev_b32 v9, 2, v9\nv_sub_u32 v14, v8, v9\nv_mov_b32 v8, 0xffff\nv_mov_b32 v9, 0xffff0000")
    for r in range(8):
        c=lambda x: 8*(x>>2)+(x&3)
        e(f"v_cmp_le_i32 vcc, {c(2*r)}, v14\nv_cmp_le_i32 s[30:31], {c(2*r+1)}, v14\ns_nop 0\nv_cndmask_b32 v10, 0, v8, vcc\nv_cndmask_b32 v11, 0, v9, s[30:31]\nv_or_b32 v{MK+r}, v10, v11")
    e("s_lshl_b32 s19, s5, 1\ns_lshl_b32 s20, s6, 2\ns_add_u32 s20, s20, s4")
    e(f"s_lshl_b32 s21, s20, 16\ns_lshl_b32 s22, s19, 10\ns_add_u32 s22, s22, s21\ns_add_u32 s22, s22, {WS_Q}\ns_add_u32 s21, s21, {WS_K}")
    e(f"s_lshr_b32 s23, s20, 1\ns_lshl_b32 s23, s23, 17\ns_and_b32 s24, s4, 1\ns_lshl_b32 s24, s24, 8\ns_add_u32 s23, s23, s24\ns_add_u32 s23, s23, {WS_V}")
    e("v_min_u32 v8, 4, v1\nv_sub_u32 v8, s5, v8\nv_max_i32 v8, 0, v8\nv_lshlrev_b32 v8, 6, v8\ns_lshl_b32 s30, s6, 3\nv_add_u32 v8, s30, v8")
def p2(k,after_loads,mid):
    e=k.e; T=Trk(k)
    S=64; O=208; NM=224; MK=240; PF=[]; npf=[0]
    st(k,'p2pre')
    e("s_lshl_b32 s30, s4, 11\ns_add_u32 s30, s30, 155648\nv_add_u32 v9, s30, v2\nds_read_b128 a[0:3], v9\nds_read_b128 a[4:7], v9 offset:1024")
    poll(k,[(8,WS_FL+F1*2048,0)],248,one=True); e("s_waitcnt lgkmcnt(0)")
    st(k,'f1ok')
    for i in range(5):
        e(f"s_add_i32 s28, s19, {2*i-8}\ns_max_i32 s28, s28, 0\ns_lshl_b32 s29, s28, 10\ns_add_u32 s30, s29, s21")
        for x in range(2): T.op('vm',f"buffer_load_dwordx4 {vr(8+8*i+4*x,4,'a')}, v2, s[12:15], s30 offen offset:{x*1024} {SC}",'k')
    VL=[]
    for i in range(5):
        for x in range(4): VL.append((f"s_add_i32 s28, s19, {2*i-8}\ns_max_i32 s28, s28, 0\ns_lshl_b32 s29, s28, 11\ns_add_u32 s30, s29, s23\n" if x==0 else "")+f"s_mov_b64 exec, s[26:27]\nbuffer_load_dwordx4 {vr(48+16*i+4*x,4,'a')}, v2, s[12:15], s30 offen offset:{x*1024} {SC}\ns_mov_b64 exec, -1")
    e("s_mov_b32 s26, 0xffff\ns_mov_b32 s27, 0xffff")
    for _ in range(8): T.op('vm',VL.pop(0),'v')
    e("s_and_b32 s40, s5, 1\ns_lshl_b32 s40, s40, 3\ns_add_u32 s40, s40, s6\ns_mul_i32 s31, s40, 7\ns_lshr_b32 s31, s31, 2\ns_lshl_b32 s31, s31, 3\ns_sub_u32 s31, s31, 32\nv_min_u32 v15, 55, v1\nv_add_u32 v15, s31, v15\nv_add_u32 v13, 224, v1\nv_cmp_gt_u32 vcc, 32, v1\ns_nop 1\nv_cndmask_b32 v15, v15, v13, vcc\nv_lshlrev_b32 v15, 3, v15")
    e(f"s_lshl_b32 s25, s19, 15\ns_lshl_b32 s21, s20, 10\ns_add_u32 s25, s25, s21\ns_add_u32 s25, s25, {WS_O}")
    st(k,'p2iss'); T.wait('vm','k'); st(k,'p2k')
    for it in range(2):
        Q=vr(4*it,4,'a'); Kf=lambda t: vr(8+4*(t+it),4,'a'); Vf=lambda f: vr(48+8*it+4*f,4,'a')
        e(f"v_mfma_f32_32x32x16_bf16 {vr(S+128,16)}, {Kf(8)}, {Q}, 0")
        for t in range(8):
            e(f"s_cmp_lt_u32 s19, {8-t-it}\ns_cbranch_scc1 P2F{it}{t}\nv_mfma_f32_32x32x16_bf16 {vr(S+16*t,16)}, {Kf(t)}, {Q}, 0\nP2N{it}{t}:")
        for r in range(16): e(f"v_cmp_le_i32 vcc, {8*(r>>2)+(r&3)}, v14\ns_nop 1\nv_cndmask_b32 v{S+r}, v{S+r}, v{S+128+r}, vcc" if False else f"v_cmp_le_i32 {sr(32+2*(r&3),2)}, {8*(r>>2)+(r&3)}, v14"+("".join(f"\nv_cndmask_b32 v{S+r-3+x}, v{S+r-3+x}, v{S+125+r+x}, {sr(32+2*x,2)}" for x in range(4)) if r&3==3 else ""))
        e(f"v_max3_f32 v8, v{S}, v{S+1}, v{S+2}\nv_max3_f32 v9, v{S+3}, v{S+4}, v{S+5}")
        for r in range(6,126,4):
            e(f"v_max3_f32 v8, v8, v{S+r}, v{S+r+1}\nv_max3_f32 v9, v9, v{S+r+2}, v{S+r+3}")
            if VL and r%8==6: e(VL.pop(0))
            elif it==1 and PF and r%16==6: e(PF.pop(0))
        if it==0: e(f"s_mov_b32 s98, {WS_FL+FA*2048}\nbuffer_load_dwordx2 v[16:17], v15, s[12:15], s98 offen {SC}")
        e(f"v_max3_f32 v8, v8, v{S+126}, v{S+127}\nv_max_f32 v8, v8, v9\nv_mov_b32 v9, v8\ns_nop 1\nv_permlane32_swap_b32 v8, v9\nv_max_f32 v8, v8, v9")
        for r in range(16): e(f"v_sub_f32 v{NM+r}, 0, v8")
        def re(t): e(f"s_cmp_lt_u32 s19, {8-t-it}\ns_cbranch_scc1 P2S{it}{t}\nv_mfma_f32_32x32x16_bf16 {vr(S+16*t,16)}, {Kf(t)}, {Q}, {vr(NM,16)}\nP2S{it}{t}:")
        st(k,f'p2max{it}'); re(1)
        for r in range(16): e(f"v_sub_f32 v{S+r}, v{S+r}, v8")
        first=[True]
        def pv(f,b):
            e(f"v_mfma_f32_32x32x16_bf16 {vr(O,16)}, {Vf(f)}, {vr(b,4)}, {'0' if first[0] else vr(O,16)}"); first[0]=False
        pend=[]
        for t in range(8):
            b=S+16*t
            for hf in range(2):
                for r in range(8*hf,8*hf+8):
                    e(f"v_exp_f32 v{b+r}, v{b+r}")
                    if r==8*hf+1 and pend: pv(*pend.pop(0))
                    if r==5 and 2<=t+2<8: re(t+2)
                    if r==13 and len(pend)>1: pv(*pend.pop(0))
                    if r%PFR==0 and PF and (it==1 or t>=PFS): e(PF.pop(0)); npf[0]+=1
                    if it==1 and t==4 and r==0: e(f's_waitcnt vmcnt({npf[0]})'); job_finish(k,'B',16)
                if hf==0 or t>0: e("s_nop 0")
                else: e("s_nop 0")
                for j in range(4): e(f"v_cvt_pk_bf16_f32 v{b+4*hf+j}, v{b+8*hf+2*j}, v{b+8*hf+2*j+1}")
                if t>0: pend.append((2*t+hf,b+4*hf))
            if t==0:
                for j in range(8): e(f"v_and_b32 v{S+8+j}, v{MK+j}, v{S+j}\nv_xor_b32 v{S+j}, v{S+8+j}, v{S+j}")
                pend+=[(0,S),(1,S+4),(16,S+8),(17,S+12)]
                if it==0:
                    e("s_waitcnt vmcnt(0)"); st(k,'p2v0')
                    e("v_cmp_ne_u64 vcc, s[96:97], v[16:17]\ns_cmp_eq_u64 vcc, 0\ns_cbranch_scc1 FAOK"); poll(k,[(15,WS_FL+FA*2048,0)],16); e("FAOK:")
                    st(k,'faok'); after_loads(T); PF=mid()
        e("s_nop 1")
        while pend: pv(*pend.pop(0))
        st(k,f'p2exp{it}')
        e(f"s_nop 7\ns_nop 3\nv_rcp_f32 v8, v{O+8}\ns_nop 0")
        for r in range(8): e(f"v_mul_f32 v{O+r}, v{O+r}, v8")
        for j in range(4): e(f"v_cvt_pk_bf16_f32 v{24+4*it+j}, v{O+2*j}, v{O+2*j+1}")
        if it==1:
            for x in PF: e(x)
        e(f"buffer_store_dwordx4 {vr(24+4*it,4)}, v2, s[12:15], s25 offen {SC}\ns_add_u32 s25, s25, 32768")
    st(k,'p2end')
    publish(k,F2); flag(k,FB,'s2')
def p2_cold(k):
    for it in range(2):
        for t in range(8):
            k.e(f"P2F{it}{t}:")
            for r in range(16): k.e(f"v_mov_b32 v{64+16*t+r}, {f2u(-1e30)}")
            k.e(f"s_branch P2N{it}{t}")
    k.e("PK_LAST:\ns_endpgm")
```

```python
from pk import *
NWD=int(os.environ.get('NWD','4')); M35=int(os.environ.get('M35','0')); ACC=16; BFR=64; LA=int(os.environ.get('LA','6')); FPOS=2*(16-LA); WS_CF=0xC0000
def ks_setup(k,ns,abase,wbase,ksteps,rbase,sa,sw):
    e=k.e
    e(f"s_mul_i32 s{sa}, s3, {2*ksteps*1024}\ns_mul_i32 s20, s4, {ns*1024}\ns_add_u32 s{sa}, s{sa}, s20\ns_add_u32 s{sa}, s{sa}, {abase}\ns_add_u32 s{sa+1}, s{sa}, {ksteps*1024}")
    e(f"s_mul_i32 s{sw}, s63, {2*ksteps*1024}\ns_add_u32 s{sw}, s{sw}, s20\ns_add_u32 s{sw}, s{sw}, {wbase}\ns_add_u32 s{sw+1}, s{sw}, {ksteps*1024}")
    e(f"s_bitcmp1_b32 s4, 1\ns_cselect_b32 s20, s{sa}, s{sa+1}\ns_cselect_b32 s{sa+1}, s{sa+1}, s{sa}\ns_mov_b32 s{sa}, s20\ns_bitcmp1_b32 s4, 0\ns_cselect_b32 s20, s{sw}, s{sw+1}\ns_cselect_b32 s{sw+1}, s{sw+1}, s{sw}\ns_mov_b32 s{sw}, s20")
def ks_pos(k,rbase,v0=4):
    e=k.e
    for i in range(4): e(f"s_xor_b32 s20, s4, {3-i}\ns_mul_i32 s20, s20, 12288\ns_add_u32 s20, s20, {rbase}\nv_add_u32 v{v0+i}, s20, v2")
    e("s_lshr_b32 s22, s4, 1\ns_lshl_b32 s21, s3, 1\ns_add_u32 s22, s22, s21\ns_and_b32 s23, s4, 1\ns_lshl_b32 s21, s63, 1\ns_add_u32 s23, s23, s21")
    e("v_and_b32 v10, 31, v1\nv_lshrrev_b32 v11, 5, v1\nv_lshlrev_b32 v10, 10, v10\nv_lshl_add_u32 v10, v11, 4, v10\nv_lshlrev_b32 v11, 4, v11")
def ld2(reg,p,sg,s):
    return [f"buffer_load_dwordx4 {vr(reg+4*i,4,p)}, v2, s[12:15], s{sg+i} offen offset:{(s&3)*1024} {SC}"+(f"\ns_add_u32 s{sg+i}, s{sg+i}, 4096" if s&3==3 else "") for i in range(2)]
def ld5(reg,p,sg,s):
    o,last=((s&3),(s&3)==3) if s<16 else ((s-16)%3,(s-16)%3==2)
    inc=7168 if s!=15 else (4096-3*7168)&0xffffffff
    return [f"buffer_load_dwordx4 {vr(reg+4*i,4,p)}, v2, s[12:15], s{sg+i} offen offset:{o*1024} {SC}"+(f"\ns_add_u32 s{sg+i}, s{sg+i}, {inc}" if last else "") for i in range(2)]
def ks_main(k,ns,sa,areg,ap,depth,wreg,post=None):
    e=k.e; T=Trk(k); Q=[]
    for s in range(ns): Q+=[(x,(s,i)) for i,x in enumerate((ld5 if ns==28 else ld2)(areg+8*(s%depth),ap,sa,s))]
    if ns==28: Q.insert(FPOS,(f"s_mov_b32 s98, {WS_FL+F4*2048}\nbuffer_load_dwordx2 v[14:15], v12, s[12:15], s98 offen {SC}",'f'))
    def issue(n):
        for _ in range(n):
            if Q:
                if Q[0][1]==(16,0) and not chk[0]: return
                x,g=Q.pop(0); T.op('vm',x,g)
                if g=='f': issue(1)
    chk=[False]
    issue(2*LA if ns==28 else 16)
    if post: post(T)
    for s in range(ns):
        a=areg+8*(s%depth)
        for t in range(2):
            if ns==28 and t==0 and s==FPOS//2:
                T.wait('vm','f'); e("v_cmp_ne_u64 vcc, s[96:97], v[14:15]\ns_cmp_eq_u64 vcc, 0\ns_cbranch_scc1 F4OK"); poll(k,[(12,WS_FL+F4*2048,0)],96); e("F4OK:"); st(k,'f4ok')
                chk[0]=True
            T.wait('vm',(s,t))
            if t==0 and s in (0,12): st(k,f'ks{ns}_{s}')
            for bb in range(2):
                d=vr(ACC+16*(2*t+bb),16)
                e(f"v_mfma_f32_32x32x16_bf16 {d}, {vr(wreg(s)+4*bb,4,'a')}, {vr(a+4*t,4,ap)}, {'0' if s==0 else d}")
            issue(1)
    st(k,f"ks{ns}_mm")
    if ns==8:
        for g in range(NB2,7):
            for x in b1(g): e(x)
    e("s_nop 9")
    for i in range(3):
        for qd in range(4): e(f"ds_write_b128 v7, {vr(ACC+16*i+4*qd,4)} offset:{i*4096+qd*1024}")
    e("s_waitcnt lgkmcnt(0)\ns_barrier")
    for i in range(3):
        for qd in range(4): e(f"ds_read_b128 {vr(ACC+16*i+4*qd,4)}, v{4+i} offset:{i*4096+qd*1024}")
    for i in range(3):
        for qd in range(4):
            e(f"s_waitcnt lgkmcnt({11-4*i-qd})")
            for r in range(4*qd,4*qd+4,2): e(f"v_pk_add_f32 {vr(BFR+r,2)}, {vr(BFR+r,2)}, {vr(ACC+16*i+r,2)}")
def b_issue(k,T):
    e=k.e
    job_issue(k,'B',JB)
    e("s_mov_b32 s57, 0x7f000000\ns_cmp_lt_u32 s2, 112\ns_cbranch_scc1 BI4\ns_cmp_ge_u32 s2, 224\ns_cbranch_scc1 BI4")
    e("s_sub_u32 s44, s2, 112")
    k.srds([('wg',48),('wu',52)])
    e(f"v_lshrrev_b32 v12, 2, v1\nv_and_b32 v13, 3, v1\nv_mul_u32_u24 v12, 3584, v12\nv_lshl_add_u32 v12, v13, 4, v12\ns_waitcnt lgkmcnt(0)\ns_cmp_ge_u32 s44, 56\ns_cselect_b32 s48, s52, s48\ns_cselect_b32 s49, s53, s49\ns_cselect_b32 s58, 56, 0\ns_cselect_b32 s45, 1024, 0\ns_sub_u32 s44, s44, s58")
    e(f"s_mul_i32 s58, s4, {128*3584}\ns_lshl_b32 s59, s44, 6\ns_add_u32 s58, s58, s59")
    for i in range(8): e(f"buffer_load_dwordx4 {vr(32+4*i,4)}, v12, s[48:51], s58 offen\ns_add_u32 s58, s58, {16*3584}")
    e("BI4:")
def cs_finish(k):
    e=k.e
    e(f"s_cmp_lt_u32 s2, 112\ns_cbranch_scc1 CS9\ns_cmp_ge_u32 s2, 224\ns_cbranch_scc1 CS9")
    e(f"s_lshl_b32 s57, s4, 11\ns_add_u32 s57, s57, {JB}\nv_lshlrev_b32 v12, 5, v1\nv_add_u32 v12, s57, v12")
    e("ds_write_b128 v12, v[176:179]\nds_write_b128 v12, v[180:183] offset:16\nds_write_b128 v12, v[184:187] offset:8192\nds_write_b128 v12, v[188:191] offset:8208")
    e("s_waitcnt lgkmcnt(0)\ns_barrier\ns_cmp_ge_u32 s4, 2\ns_cbranch_scc1 CS8")
    e(f"v_and_b32 v13, 31, v1\nv_lshrrev_b32 v14, 5, v1\nv_lshlrev_b32 v12, 2, v13\nv_lshl_add_u32 v12, v14, 12, v12\ns_lshl_b32 s57, s4, 13\ns_add_u32 s57, s57, {JB}\nv_add_u32 v12, s57, v12")
    for j in range(32): e(f"ds_read_b32 v{16+j}, v12 offset:{j*128}")
    e("s_waitcnt lgkmcnt(0)")
    for sz in (16,8,4,2,1):
        for j in range(sz): e(f"v_add_f32 v{16+j}, v{16+j}, v{16+j+sz}")
    e("v_mov_b32 v17, v16\ns_nop 1\nv_permlane32_swap_b32 v16, v17\nv_add_f32 v16, v16, v17")
    e("v_cvt_pk_bf16_f32 v18, v16, v16\nv_lshlrev_b32 v17, 16, v18\nv_sub_f32 v17, v16, v17\nv_cvt_pk_bf16_f32 v19, v17, 0")
    e("v_lshrrev_b32 v14, 4, v13\nv_and_b32 v13, 15, v13\nv_lshlrev_b32 v13, 4, v13\nv_lshl_add_u32 v13, v14, 9, v13")
    e(f"s_lshl_b32 s57, s44, 10\ns_lshr_b32 s58, s45, 2\ns_add_u32 s57, s57, s58\ns_xor_b32 s58, s4, 1\ns_lshl_b32 s58, s58, 3\ns_add_u32 s57, s57, s58\ns_add_u32 s57, s57, {WS_CF}\nbuffer_store_dwordx2 v[18:19], v13, s[12:15], s57 offen {SC}\nCS8:\ns_barrier\nCS9:")
def b1(g):
    return [("s_mov_b32 m0, s43\ns_nop 0\n" if i==0 else "")+f"buffer_load_dwordx4 v2, s[12:15], s42 offen offset:{i*1024} {SC} lds"+("\ns_add_u32 s42, s42, 16384\ns_add_u32 s43, s43, 16384" if i==3 else "") for i in range(4)]
NB1=int(os.environ.get('NB1','2'))
NB2=int(os.environ.get('NB2','5'))
def p3_pref(k):
    e=k.e
    if M35: e("s_and_b32 s3, s2, 7\ns_lshl_b32 s3, s3, 2\ns_lshr_b32 s63, s2, 6\ns_add_u32 s3, s3, s63\ns_bfe_u32 s63, s2, 0x30003")
    else: e("s_mov_b32 s3, s5\ns_mov_b32 s63, s6")
    ks_setup(k,8,WS_O,WS_WO,32,0,16,26); ks_pos(k,114688,4)
    e(f"s_and_b32 s40, s5, 1\ns_lshl_b32 s40, s40, 3\ns_add_u32 s40, s40, s6\ns_mul_i32 s41, s40, 229376\ns_add_u32 s41, s41, {WS_WGU}\ns_lshl_b32 s43, s4, 12\ns_add_u32 s42, s41, s43")
    e(f"s_lshl_b32 s28, s22, 15\ns_lshl_b32 s29, s23, 6\ns_add_u32 s28, s28, s29\ns_lshl_b32 s29, s23, 7\ns_add_u32 s30, s29, 4096\ns_add_u32 s31, s29, 8192")
    e(f"v_and_b32 v15, 0x3c, v1\ns_lshl_b32 s57, s4, 9\ns_add_u32 s57, s57, {1536*4}\ns_cmp_lt_u32 s2, 112\ns_cbranch_scc1 PF9\ns_cmp_ge_u32 s2, 224\ns_cbranch_scc1 PF9")
    for i in range(8): e(f"buffer_load_dword a{232+i}, v15, s[12:15], s57 offen offset:{64*i} {SC}\nbuffer_load_dword a{240+i}, v15, s[12:15], s57 offen offset:{2048+64*i} {SC}")
    e("PF9:")
    L=[]
    for s in range(8): L+=ld2(128+8*s,'a',26,s)
    L+=[f"buffer_load_dwordx4 {vr(192+4*q,4,'a')}, v10, s[8:11], s28 offen offset:{32*q}" for q in range(2)]
    for q in range(4): L+=[f"buffer_load_dwordx4 {vr(200+4*q,4,'a')}, v11, s[12:15], s30 offen offset:{32*q} {SC}",f"buffer_load_dwordx4 {vr(216+4*q,4,'a')}, v11, s[12:15], s31 offen offset:{32*q} {SC}"]
    for g in range(NB1): L+=b1(g)
    return L
def p3(k):
    e=k.e
    X=80; GA=88; CB=104
    for g in range(NB1,NB2):
        for x in b1(g): e(x)
    e("v_and_b32 v12, 7, v1\nv_lshlrev_b32 v12, 3, v12\ns_lshl_b32 s28, s3, 6\nv_add_u32 v12, s28, v12\ns_lshl_b32 s35, s3, 3\ns_add_u32 s35, s35, s63")
    st(k,'p3pre')
    poll(k,[(12,WS_FL+F2*2048,0)],one=True)
    st(k,'f2ok')
    def post(T):
        for r in range(40): e(f"v_accvgpr_read_b32 v{80+r}, a{192+r}")
        e("s_cmp_lt_u32 s2, 112\ns_cbranch_scc1 CV9\ns_cmp_ge_u32 s2, 224\ns_cbranch_scc1 CV9")
        for r in range(16): e(f"v_accvgpr_read_b32 v{128+r}, a{232+r}")
        for i in range(8):
            for j in range(4):
                unpack(k,14,32+4*i+j)
                for d,c in ((176,136),(184,128)):
                    if i==0: e(f"v_pk_mul_f32 {vr(d+2*j,2)}, v[14:15], {vr(c,2)} op_sel_hi:[1,0]")
                    else: e(f"v_pk_fma_f32 {vr(d+2*j,2)}, v[14:15], {vr(c+(i&~1),2)}, {vr(d+2*j,2)} op_sel:[0,{i&1},0] op_sel_hi:[1,{i&1},1]")
        e("CV9:")
    ks_main(k,8,16,0,'a',9,lambda s:128+8*s,post)
    st(k,'p3red')
    e("v_mov_b32 v12, 0\nv_mov_b32 v13, 0")
    for q in range(2): e(f"v_permlane32_swap_b32 v{X+4*q}, v{X+4*q+2}\nv_permlane32_swap_b32 v{X+4*q+1}, v{X+4*q+3}")
    R=BFR
    for j in range(8):
        unpack(k,14,X+j)
        e(f"v_fma_f32 v14, v{R+2*j}, v{GA+2*j}, v14\nv_fma_f32 v15, v{R+2*j+1}, v{GA+2*j+1}, v15\nv_cvt_pk_bf16_f32 v{16+j}, v14, v15")
        unpack(k,14,16+j)
        e(f"v_add_f32 v12, v12, v14\nv_fmac_f32 v13, v14, v14\nv_add_f32 v12, v12, v15\nv_fmac_f32 v13, v15, v15")
        e(f"v_mul_f32 v14, v14, v{CB+2*j}\nv_mul_f32 v15, v15, v{CB+2*j+1}\nv_cvt_pk_bf16_f32 v{24+j}, v14, v15")
    e(f"s_lshl_b32 s28, s22, 15\ns_lshl_b32 s29, s23, 11\ns_add_u32 s28, s28, s29\ns_add_u32 s29, s28, {WS_Y2}")
    e(f"buffer_store_dwordx4 v[24:27], v2, s[12:15], s29 offen {SC}\nbuffer_store_dwordx4 v[28:31], v2, s[12:15], s29 offen offset:1024 {SC}")
    e(f"s_lshl_b32 s28, s22, 12\ns_lshl_b32 s29, s23, 8\ns_add_u32 s28, s28, s29\ns_add_u32 s28, s28, {WS_ST}\nv_and_b32 v3, 31, v1\nv_lshlrev_b32 v3, 3, v3")
    e("v_mov_b32 v14, v12\nv_mov_b32 v15, v13\ns_nop 1\nv_permlane32_swap_b32 v12, v14\nv_permlane32_swap_b32 v13, v15\nv_add_f32 v12, v12, v14\nv_add_f32 v13, v13, v15")
    e(f"buffer_store_dwordx2 v[12:13], v3, s[12:15], s28 offen {SC}")
    for j in range(8): e(f"v_mov_b32 v{112+j}, v{16+j}")
    e(f"v_and_b32 v34, 15, v1\nv_min_u32 v34, 13, v34\nv_lshlrev_b32 v34, 3, v34\nv_add_u32 v34, s63, v34\nv_lshlrev_b32 v34, 3, v34\ns_mov_b32 s98, {WS_FL+FB*2048}\nbuffer_load_dwordx2 v[32:33], v34, s[12:15], s98 offen {SC}")
    ks_setup(k,28,WS_HH,WS_WD,112,0,38,36)
    st(k,'p3end'); publish(k,F3,'s35')
    for x in b1(7): e(x)
    e("v_mov_b32 v120, v32\nv_mov_b32 v121, v33\nv_mov_b32 v122, v34"); cs_finish(k); st(k,'jobB')
    e("v_cmp_ne_u64 vcc, s[96:97], v[120:121]\ns_cmp_eq_u64 vcc, 0\ns_cbranch_scc1 FBOK"); poll(k,[(122,WS_FL+FB*2048,0)],36); e("FBOK:")
    for s in range(NWD):
        for x in ld5(128+8*s,'a',36,s): e(x)
def p5(k):
    e=k.e
    X=112; GB=80
    ks_pos(k,0)
    k.srds([('out',24)])
    e("s_lshl_b32 s29, s23, 7\ns_add_u32 s30, s29, 10240")
    for q in range(4): e(f"buffer_load_dwordx4 {vr(GB+4*q,4)}, v11, s[12:15], s30 offen offset:{32*q} {SC}")
    e("v_cmp_ne_u64 vcc, s[96:97], v[14:15]\ns_cmp_eq_u64 vcc, 0\ns_cbranch_scc1 F4AOK"); poll(k,[(12,WS_FL+F4A*2048,0)],96); e("F4AOK:")
    st(k,'p5pre')
    ks_main(k,28,38,120,'v',17,lambda s: 128+8*s if s<16 else 8*(s-16))
    st(k,'p5red')
    R=BFR
    for j in range(8):
        unpack(k,14,X+j)
        e(f"v_fma_f32 v14, v{R+2*j}, v{GB+2*j}, v14\nv_fma_f32 v15, v{R+2*j+1}, v{GB+2*j+1}, v15\nv_cvt_pk_bf16_f32 v{16+j}, v14, v15")
    e("s_lshl_b32 s28, s22, 15\ns_lshl_b32 s29, s23, 6\ns_add_u32 s28, s28, s29")
    e("v_permlane32_swap_b32 v16, v18\nv_permlane32_swap_b32 v17, v19\nv_permlane32_swap_b32 v20, v22\nv_permlane32_swap_b32 v21, v23")
    e("buffer_store_dwordx4 v[16:19], v10, s[24:27], s28 offen\nbuffer_store_dwordx4 v[20:23], v10, s[24:27], s28 offen offset:32")
    e(f"s_or_b32 s28, s2, s4\ns_cmp_lg_u32 s28, 0\ns_cbranch_scc1 P5E\nv_mov_b32 v12, s96\nv_mov_b32 v13, s97\nv_mov_b32 v14, 0\ns_mov_b32 s28, {WS_NONCE}\nbuffer_store_dwordx2 v[12:13], v14, s[12:15], s28 offen\nP5E:")
```

```python
from pk2 import *
def p4(k,BUD=int(os.environ.get('BUD','28')),APRE=int(os.environ.get('APRE','20')),MI=8,CK=int(os.environ.get('CK','25'))):
    e=k.e; T=Trk(k)
    CSL=155648
    slot=lambda j: (131072+j*12288) if j<2 else (j-2)*16384
    ACC=128; BF=[32,48,96]; STT=64
    e("s_and_b32 s27, s4, 1\ns_lshr_b32 s16, s5, 1\ns_lshl_b32 s16, s16, 2\ns_add_u32 s16, s16, s4")
    e(f"s_lshl_b32 s17, s16, 15\ns_add_u32 s17, s17, {WS_Y2}\ns_mul_i32 s31, s4, 3072\ns_add_u32 s30, s41, s31\ns_add_u32 s30, s30, 131072")
    def st2(j):
        return [((f"s_add_u32 m0, s31, {slot(j)}\ns_nop 0\n" if i==0 else "")+f"buffer_load_dwordx4 v2, s[12:15], s30 offen offset:{i*1024} {SC} lds"+(f"\ns_add_u32 s30, s30, 12288" if i==2 else ""),'vm',('s2',j)) for i in range(3)]
    def run(it):
        if isinstance(it,str): e(it)
        elif it[1]=='w': T.wait(it[0],it[2])
        else: T.op(it[1],it[0],it[2])
    for it in st2(0)+st2(1): run(it)
    e(f"s_mul_i32 s20, s40, 3584\ns_add_u32 s20, s20, {WS_CF}\nv_and_b32 v17, 31, v1\nv_lshlrev_b32 v17, 4, v17")
    e(f"s_lshl_b32 s21, s16, 12\ns_add_u32 s21, s21, {WS_ST}\nv_lshlrev_b32 v4, 3, v1")
    csd=[(f"buffer_load_dwordx4 {vr(68+4*b,4)}, v17, s[12:15], s20 offen offset:{b*512} {SC}",'vm','cs') for b in range(7)]; misc=[]
    misc+=[(f"buffer_load_dwordx2 {vr(STT+2*i,2)}, v4, s[12:15], s21 offen offset:{i*512} {SC}",'vm','st') for i in range(8)]
    VQ=[]
    for s in range(32):
        if s==MI: VQ+=misc
        VQ.append((f"buffer_load_dwordx4 {vr(4*s,4,'a')}, v2, s[12:15], s17 offen offset:{(s&3)*1024} {SC}"+("\ns_add_u32 s17, s17, 4096" if s&3==3 else ""),'vm',('a',s)))
    fcl=((f"s_mov_b32 s98, {WS_FL+FC*2048}\nbuffer_load_dwordx2 v[14:15], v13, s[12:15], s98 offen {SC}",'vm','fc'))
    for j in range(2,8): VQ+=st2(j)
    for s in range(NWD,16): VQ+=[(x,'vm','wd') for x in ld5(128+8*s,'a',36,s)]
    for s in range(16,28): VQ+=[(x,'vm',('w2',2*(s-16)+2)) for x in ld5(8*(s-16),'a',36,s)]
    e(f"v_add_u32 v8, 65536, v2")
    e(f"s_mul_i32 s33, s16, {112*1024}\ns_mul_i32 s34, s40, 7168\ns_add_u32 s33, s33, s34\ns_add_u32 s33, s33, {WS_HH}\ns_add_u32 s34, s33, 4096")
    e("v_and_b32 v12, 15, v1\nv_lshlrev_b32 v12, 3, v12\ns_lshr_b32 s28, s5, 1\ns_lshl_b32 s28, s28, 7\nv_add_u32 v12, s28, v12")
    st(k,'p4pre')
    e("v_and_b32 v13, 3, v1\ns_mul_i32 s28, s40, 7\ns_lshr_b32 s28, s28, 1\nv_add_u32 v13, s28, v13\nv_bfe_u32 v15, v1, 4, 1\nv_mul_u32_u24 v15, 56, v15\nv_add3_u32 v13, v13, v15, 56\nv_add_u32 v13, 56, v13\nv_lshlrev_b32 v13, 3, v13")
    e("s_xor_b32 s28, s4, 3\ns_or_b32 s28, s28, s2\ns_cmp_lg_u32 s28, 0\ns_cbranch_scc1 NCE"); poll(k,allflags(F1))
    e(f"v_mov_b32 v240, s96\nv_mov_b32 v241, s97\nv_mov_b32 v242, 0\ns_mov_b32 s28, {WS_NONCE}\nbuffer_store_dwordx2 v[240:241], v242, s[12:15], s28 offen\nNCE:")
    poll(k,[(12,WS_FL+F3*2048,0)],one=True); flag(k,FC,'s2'); T.done['vm']=len(T.q['vm'])
    st(k,'f3ok')
    e('s_lshr_b32 s29, s5, 1')
    touch(k,16,WS_Y2,'s29',131072,'s_and_b32 s98, s5, 1\ns_lshl_b32 s98, s98, 2\ns_and_b32 s99, s6, 3\ns_add_u32 s98, s98, s99',16384,4096,32)
    e("v_and_b32 v12, 15, v1\nv_lshlrev_b32 v12, 3, v12\ns_lshr_b32 s28, s3, 1\ns_lshl_b32 s28, s28, 7\nv_add_u32 v12, s28, v12")
    for _ in range(APRE): run(VQ.pop(0))
    MU,SG,AA=18,19,20
    stats=[('vm','w','st')]
    for i in range(1,8): stats+=[f"v_add_f32 v{STT}, v{STT}, v{STT+2*i}",f"v_add_f32 v{STT+1}, v{STT+1}, v{STT+2*i+1}"]
    stats+=[f"v_mov_b32 v{STT+2}, v{STT}",f"v_mov_b32 v{STT+3}, v{STT+1}","s_nop 1",f"v_permlane32_swap_b32 v{STT}, v{STT+2}",f"v_permlane32_swap_b32 v{STT+1}, v{STT+3}",
        f"v_add_f32 v{STT}, v{STT}, v{STT+2}",f"v_add_f32 v{STT+1}, v{STT+1}, v{STT+3}",
        f"v_mul_f32 v{MU}, {f2u(1/512)}, v{STT}",f"v_mul_f32 v{STT+1}, {f2u(1/512)}, v{STT+1}",f"v_fma_f32 v{STT+1}, -v{MU}, v{MU}, v{STT+1}",f"v_max_f32 v{STT+1}, 0, v{STT+1}",
        f"v_add_f32 v{STT+1}, {f2u(1e-5)}, v{STT+1}",f"v_rsq_f32 v{AA}, v{STT+1}","s_nop 0",f"v_mul_f32 v{SG}, v{AA}, v{STT+1}",f"v_mul_f32 v{AA}, {f2u(-1.4426950408889634)}, v{AA}"]
    stats+=[f"v_sub_f32 v{MU}, 0, v{MU}","v_cmp_gt_u32 vcc, 32, v1"]
    for d,x in ((24,SG),(26,MU)):
        stats+=[f"v_cvt_pk_bf16_f32 v{d+1}, v{x}, 0",f"v_lshlrev_b32 v21, 16, v{d+1}",f"v_sub_f32 v21, v{x}, v21",f"v_cvt_pk_bf16_f32 v{d}, v{x}, v21",f"v_cndmask_b32 v{d}, 0, v{d}, vcc",f"v_cndmask_b32 v{d+1}, 0, v{d+1}, vcc"]
    def epi(b,cr=0,nxt=None):
        L=[]; D=ACC+16*b
        L+=[f"v_mul_f32 v{D+r}, v{D+r}, v{AA}" for r in range(8)]
        L+=[f"v_exp_f32 v{D+r}, v{D+r}" for r in range(8)]
        L+=[f"v_fma_f32 v{D+r}, v{D+r}, v{SG}, v{SG}" for r in range(8)]
        L+=[f"v_rcp_f32 v{D+r}, v{D+r}" for r in range(8)]
        L+=[f"v_mul_f32 v{D+r}, v{D+r}, v{D+8+r}" for r in range(8)]
        L+=[f"v_cvt_pk_bf16_f32 v{D+8+j}, v{D+2*j}, v{D+2*j+1}" for j in range(4)]
        L+=[(f"buffer_store_dwordx4 {vr(D+8,4)}, v2, s[12:15], s{33+b//4} offen offset:{(b&3)*1024} {SC}",'vm','o')]
        return L
    cost=lambda it: (8 if isinstance(it,str) and (it.startswith('v_exp') or it.startswith('v_rcp')) else 4) if isinstance(it,str) or it[1]!='vm' else 8
    def reads(p,s):
        L=[]; b0=BF[(s+32*p)%3]
        if p==0:
            for b in range(4): L.append((f"ds_read_b128 {vr(b0+4*b,4)}, v{2 if s<16 else 8} offset:{(s*4096+b*1024)&65535}",'lg',('b',p,s,b)))
        else:
            if s&3==0: L.append(f"v_add_u32 v16, {slot(s>>2)}, v2")
            for b in range(3): L.append((f"ds_read_b128 {vr(b0+4*b,4)}, v16 offset:{(s&3)*3072+b*1024}",'lg',('b',p,s,b)))
        return L
    for it in reads(0,0)+reads(0,1): run(it)
    steps=[(0,s) for s in range(32)]+[(1,s) for s in range(32)]
    fill=[]; nm=0
    for idx,(p,s) in enumerate(steps):
        nb=4 if p==0 else 3
        if p==0 and s==MI+3: fill+=stats
        if p==0 and s==CK-6: run(fcl)
        if p==0 and s==CK:
            while any(x[2]=='fc' for x in VQ): run(VQ.pop(0))
            T.wait('vm','fc'); e("v_cmp_ne_u64 vcc, s[96:97], v[14:15]\ns_cmp_eq_u64 vcc, 0\ns_cbranch_scc1 FCOK"); poll(k,[(13,WS_FL+FC*2048,0)]); e("FCOK:"); assert not fill
            for x in csd: run(x)
        if p==1 and s==0:
            T.wait('vm','cs')
            for b in range(7): e(f"v_mfma_f32_32x32x16_bf16 {vr(ACC+16*b,16)}, {vr(68+4*b,4)}, v[24:27], {vr(ACC+16*b,16) if b<4 else '0'}")
        if p==1 and s==1: fill+=epi(0,1,1)+epi(1,1,2)+epi(2,1,3)+epi(3,1)
        rd=[]
        if idx+2<64:
            p2,s2=steps[idx+2]
            if s2&3==0:
                if p2==1:
                    tg=('s2',s2>>2)
                    while any(x[2]==tg for x in VQ): run(VQ.pop(0))
                    T.wait('vm',tg)
                if idx==58: assert not fill; T.wait('vm','o')
                e("s_barrier")
                if idx==58: flag(k,F4A,'s7')
            rd=reads(p2,s2)
        if p==0:
            while any(x[2]==('a',s) for x in VQ): run(VQ.pop(0))
            T.wait('vm',('a',s))
        if idx in (0,16,32,48): st(k,f'p4_{idx}')
        for b in range(nb):
            if b==0: T.wait('lg',('b',p,s,nb-1))
            d=vr(ACC+16*(b+4*p),16)
            e(f"v_mfma_f32_32x32x16_bf16 {d}, {vr(BF[idx%3]+4*b,4)}, {vr(4*s,4,'a')}, {'0' if (s==0 and p==0) else d}")
            bud=BUD; nm+=1; n=0
            while rd and (n<1 or b==nb-1 or isinstance(rd[0],str)):
                it=rd.pop(0); run(it); bud-=8; n+=0 if isinstance(it,str) else 1
            if VQ and nm%2==0:
                for qi,q in enumerate(VQ):
                    tg=q[2]
                    if isinstance(tg,tuple) and tg[0]=='s2' and p==0 and (s>>2)<tg[1]: continue
                    if isinstance(tg,tuple) and tg[0]=='w2' and not (p==1 and s>=tg[1]): continue
                    run(VQ.pop(qi)); bud-=8; break
            while fill and bud>=cost(fill[0]):
                it=fill.pop(0); run(it); bud-=cost(it)
    for it in VQ: run(it)
    st(k,'p4mm')
    for it in fill: run(it)
    e("s_nop 11")
    for b in range(4,7):
        for it in epi(b,0): run(it)
    st(k,'p4end')
    e(f"s_mov_b32 s98, {WS_FL+F4A*2048}\nbuffer_load_dwordx2 v[14:15], v12, s[12:15], s98 offen {SC}")
    publish(k,F4)
def main():
    k=Kern(NAME+"_kernel",256,256,163840,256,256); e=k.e
    e("s_cmp_ge_u32 s2, 256\ns_cbranch_scc1 PK_END")
    stamp(k,14,True); stamp(k,0)
    def ja(T): job_issue(k,'A',JB); T.log('vm','j',4)
    p1(k,ja)
    p2(k,lambda T: b_issue(k,T),lambda: p3_pref(k))
    p3(k); p4(k); p5(k)
    if os.environ.get('DBGOUT'):
        e("s_or_b32 s28, s2, s4\ns_cmp_lg_u32 s28, 0x45\ns_cbranch_scc1 PK_END"); k.srds([('dbg',24)])
        e("s_waitcnt vmcnt(0)\ns_memrealtime s[94:95]\ns_waitcnt lgkmcnt(0)\nv_mov_b32 v0, 0\ns_sub_u32 s94, s94, s92")
        for i in range(1,16):
            if i<14: e(f"s_sub_u32 s{64+2*i}, s{64+2*i}, s64")
            e(f"v_mov_b32 v1, s{64+2*i}\nbuffer_store_dword v1, v0, s[24:27], 0 offen offset:{4*i}")
    else: stamp_out(k,0)
    e("PK_END:\ns_endpgm")
    p2_cold(k)
    return k
if __name__=='__main__':
    import sys
    k=main()
    s=build([k]).replace(f"; @launch kernel={k.name} grid","; @launch grid").replace("next_free_sgpr 96","next_free_sgpr 102")
    open(sys.argv[1] if len(sys.argv)>1 else f"cdna_kernels/{NAME}.s","w").write(s)
```

```python
from common import *
import re
WS_FL=0x90000; WS_NONCE=WS_FL+0x8000; WS_MP=0xA0000
FM,F1,FA,F2,FB,F3,F4,F4A,FC=range(9)
SC="sc1"
QSCALE=0.25*1.4426950408889634
LNW=int(os.environ.get('LNW','0'))
CT=int(os.environ.get('CT','2'))
JAS=int(os.environ.get('JAS','0')); JAF=int(os.environ.get('JAF','23'))
PFS=int(os.environ.get('PFS','6'))
TL=int(os.environ.get('TL','0'))
uid=[0]; PFR=int(os.environ.get('PFR','5'))
MAP=int(os.environ.get('MAP','0')); PFM=int(os.environ.get('PFM','5'))
def publish(k,ph,idx='s7',drain=True):
    e=k.e; uid[0]+=1
    e("s_waitcnt vmcnt(0)"); st(k,f"dr{ph}"); e("s_barrier"); flag(k,ph,idx)
def flag(k,ph,idx):
    e=k.e; uid[0]+=1
    e(f"s_cmp_lg_u32 s4, 0\ns_cbranch_scc1 PB{uid[0]}")
    e(f"s_lshl_b32 s98, {idx}, 3\ns_add_u32 s98, s98, {WS_FL+ph*2048}\nv_mov_b32 v252, s96\nv_mov_b32 v253, s97\nv_mov_b32 v254, 0\ns_mov_b64 exec, 1\nbuffer_store_dwordx2 v[252:253], v254, s[12:15], s98 offen {SC}\ns_mov_b64 exec, -1\nPB{uid[0]}:")
SL=int(os.environ.get('SL','4')); SLG=int(os.environ.get('SLG','8'))
def poll(k,items,r0=240,gran=False,one=False):
    e=k.e; uid[0]+=1; u=uid[0]
    if one: e(f"s_cmp_lg_u32 s4, 0\ns_cbranch_scc1 PD{u}")
    e(f"s_mov_b32 s99, 0\nPL{u}:")
    r=r0; regs=[]
    for va,so,wide in items:
        n=4 if wide else 2
        e(f"s_mov_b32 s98, {so}\nbuffer_load_dwordx{n} {vr(r,n)}, v{va}, s[12:15], s98 offen {SC}")
        regs+=[r+2] if gran else [r+2*i for i in range(n//2)]; r+=4
    e("s_add_u32 s99, s99, 1\ns_waitcnt vmcnt(0)")
    for i,q in enumerate(regs):
        e(f"v_cmp_ne_u64 {'vcc' if i==0 else 's[100:101]'}, s[96:97], {vr(q,2)}")
        if i: e("s_or_b64 vcc, vcc, s[100:101]")
    e(f"s_cmp_eq_u64 vcc, 0\ns_cbranch_scc1 PD{u}\ns_sleep {SLG if gran else SL}\ns_cmp_lt_u32 s99, 50000\ns_cbranch_scc1 PL{u}\nPD{u}:")
    if one: e("s_waitcnt vmcnt(0)\ns_barrier")
def allflags(ph): return [(2,WS_FL+ph*2048,1),(2,WS_FL+ph*2048+1024,1)]
JB=139264
WR=65536
def p1(k,jobA_issue):
    e=k.e; T=Trk(k)
    k.srds([('ws',12),('x',8),('c',16),('wm',20),('wqkv',24)])
    lane_setup(k,1,4)
    if CT:
        e(("s_cmp_ge_u32 s2, 16" if CT==1 else "s_lshr_b32 s30, s2, 4\ns_cmp_lg_u32 s30, 12")+"\ns_cbranch_scc1 PK_FIRST\ns_getpc_b64 s[38:39]\ns_bfe_u32 s30, s2, 0x10003\ns_lshl_b32 s30, s30, 2\ns_add_u32 s30, s30, s4\ns_lshl_b32 s30, s30, 13\nv_lshlrev_b32 v10, 7, v1\nv_add_u32 v10, s30, v10\nv_min_u32 v10, PK_LAST-PK_FIRST, v10\nv_mov_b32 v11, s39\nv_add_co_u32 v10, vcc, s38, v10\nv_addc_co_u32 v11, vcc, 0, v11, vcc\nglobal_load_dword v63, v[10:11], off\nPK_FIRST:")
    if MAP==0:
        e("s_and_b32 s5, s2, 6\ns_lshl_b32 s5, s5, 2\ns_lshr_b32 s6, s2, 5\ns_add_u32 s5, s5, s6")
        e("s_and_b32 s6, s2, 1\ns_lshl_b32 s6, s6, 2\ns_bfe_u32 s7, s2, 0x20003\ns_add_u32 s6, s6, s7")
    else:
        e("s_and_b32 s5, s2, 7\ns_lshl_b32 s5, s5, 2\ns_lshr_b32 s6, s2, 6\ns_add_u32 s5, s5, s6\ns_bfe_u32 s6, s2, 0x30003")
    e("s_lshl_b32 s7, s5, 3\ns_add_u32 s7, s7, s6")
    e("v_lshlrev_b32 v2, 4, v1\nv_lshrrev_b32 v3, 3, v1\nv_and_b32 v4, 7, v1\nv_lshlrev_b32 v4, 4, v4")
    e("s_movk_i32 s28, 6144\nv_mul_lo_u32 v5, v3, s28\nv_add_u32 v5, v5, v4\nv_lshlrev_b32 v6, 1, v3")
    e("s_and_b32 s29, s2, 3\ns_lshl_b32 s29, s29, 2\ns_add_u32 s29, s29, s4\ns_lshl_b32 s30, s29, 6\ns_mul_i32 s29, s29, 196608\ns_lshr_b32 s31, s2, 2\ns_lshl_b32 s31, s31, 7\ns_add_u32 s29, s29, s31")
    e("s_cmp_lt_u32 s2, 192\ns_cselect_b32 s29, s29, 0x7f000000")
    e("s_lshl_b32 s32, s5, 16\ns_lshl_b32 s33, s4, 14\ns_add_u32 s32, s32, s33")
    e("v_and_b32 v7, 16, v1\nv_lshlrev_b32 v7, 2, v7\nv_xor_b32 v7, v7, v4\nv_mul_u32_u24 v8, 3072, v3\nv_add_u32 v7, v7, v8")
    e(f"s_mul_i32 s34, s4, {8*3072}\ns_lshl_b32 s35, s6, 7\ns_add_u32 s34, s34, s35\ns_lshr_b32 s35, s4, 1\ns_mul_i32 s35, s35, 6144\ns_and_b32 s36, s4, 1\ns_lshl_b32 s36, s36, 10\ns_add_u32 s35, s35, s36\ns_add_u32 s35, s35, {WR}")
    e(f"s_waitcnt lgkmcnt(0)\ns_load_dwordx2 s[96:97], s[12:13], {WS_NONCE}")
    for i in range(4): T.op('vm',f"buffer_load_dwordx4 {vr(16+4*i,4)}, v5, s[20:23], s29 offen\ns_add_u32 s29, s29, 49152",'m')
    for i in range(4): T.op('vm',f"buffer_load_ushort v{12+i}, v6, s[16:19], s30 offen offset:{16*i}",'m')
    X=192; st(k,"karg")
    for i in range(16): e(f"buffer_load_dwordx4 {vr(X+4*i,4)}, v2, s[8:11], s32 offen offset:{(i&3)*1024}"+("\ns_add_u32 s32, s32, 4096" if i&3==3 else ""))
    def wst(g):
        return [(f"s_add_u32 m0, s35, {(g%6)*12288+p*2048}\ns_add_u32 s37, s34, {p*1024}\nbuffer_load_dwordx4 v7, s[24:27], s37 offen lds"+(f"\ns_add_u32 s34, s34, {32*3072}" if p==2 else ""),('w',g)) for p in range(3)]
    WQ_=[]
    for g in range(16): WQ_+=wst(g)
    def issue(n):
        for _ in range(n):
            if WQ_:
                x,g=WQ_.pop(0); T.op('vm',x,g)
    nt=1
    pfi="buffer_load_dword v62, v9, s[40:43], s44 offen"
    if PFM==1: e(pfi)
    elif PFM>=2: e(f"v_mul_u32_u24 v10, 3072, v1\ns_and_b32 s45, s5, 7\ns_mul_i32 s45, s45, {64*3072}\ns_lshl_b32 s33, s6, 7\ns_add_u32 s45, s45, s33\ns_min_u32 s33, s4, 2\ns_lshl_b32 s33, s33, 10\ns_add_u32 s45, s45, s33\nbuffer_load_dword v62, v10, s[24:27], s45 offen")
    else: nt=0
    if PFM==4: e(pfi); nt+=1
    if TL:
        e(f"s_lshr_b32 s30, s2, 3\ns_cmp_lg_u32 s30, 30\ns_cbranch_scc1 TL9")
        k.srds([('wg',40),('wu',44),('wd',48),('wo',52),('out',56)])
        e(f"v_lshlrev_b32 v10, 19, v1\ns_lshl_b32 s30, s4, 17\nbuffer_load_dword v61, v10, s[12:15], s30 offen\nv_lshlrev_b32 v10, 15, v1\ns_lshl_b32 s30, s4, 13\ns_waitcnt lgkmcnt(0)")
        for r in (40,44,48,52,56): e(f"buffer_load_dword v61, v10, {sr(r,4)}, s30 offen")
        e("TL9:")
    if JAS==-2: jobA_issue(T); nt+=4
    e(f"s_waitcnt vmcnt({16+nt})")
    st(k,"mdata")
    for i in range(8): e(f"v_mov_b32 v{32+i}, 0")
    for i in range(4):
        r=12+i
        e(f"v_lshlrev_b32 v{r}, 16, v{r}\nv_mul_f32 v10, {f2u(-1.4426950408889634)}, v{r}\nv_exp_f32 v10, v10\ns_nop 0\nv_add_f32 v10, 1.0, v10\nv_rcp_f32 v10, v10\ns_nop 0\nv_mul_f32 v{r}, v{r}, v10\nv_cvt_pk_bf16_f32 v{r}, v{r}, v{r}\nv_lshlrev_b32 v{r}, 16, v{r}")
        for j in range(4):
            unpack(k,10,16+4*i+j)
            e(f"v_fmac_f32 v{32+2*j}, v10, v{r}\nv_fmac_f32 v{33+2*j}, v11, v{r}")
    e("s_lshl_b32 s30, s4, 11\nv_lshlrev_b32 v10, 8, v3\nv_lshl_add_u32 v10, v4, 1, v10\nv_add_u32 v10, s30, v10\nds_write_b128 v10, v[32:35]\nds_write_b128 v10, v[36:39] offset:16")
    e("s_waitcnt lgkmcnt(0)\ns_add_u32 s96, s96, 1\ns_addc_u32 s97, s97, 0\ns_barrier\ns_cmp_lg_u32 s4, 0\ns_cbranch_scc1 P0_A\ns_cmp_ge_u32 s2, 192\ns_cbranch_scc1 P0_A")
    e("v_and_b32 v10, 31, v1\nv_lshrrev_b32 v11, 5, v1\nv_lshlrev_b32 v11, 12, v11\nv_lshl_add_u32 v11, v10, 3, v11\nv_lshlrev_b32 v10, 4, v10")
    for j in range(16): e(f"ds_read_b64 {vr(16+2*j,2)}, v11 offset:{j*256}")
    e(f"s_and_b32 s29, s2, 3\ns_mul_i32 s29, s29, 24576\ns_lshl_b32 s30, s31, 2\ns_add_u32 s29, s29, s30\ns_add_u32 s29, s29, {WS_MP}\ns_waitcnt lgkmcnt(0)")
    for sz in (16,8,4,2):
        for j in range(sz): e(f"v_add_f32 v{16+j}, v{16+j}, v{16+j+sz}")
    e(f"v_mov_b32 v18, v16\nv_mov_b32 v19, v17\ns_nop 1\nv_permlane32_swap_b32 v16, v18\nv_permlane32_swap_b32 v17, v19\nv_add_f32 v56, v16, v18\nv_add_f32 v57, v17, v19\nv_mov_b32 v58, s96\nv_mov_b32 v59, s97\nbuffer_store_dwordx4 v[56:59], v10, s[12:15], s29 offen {SC}\nP0_A:")
    st(k,'modpub')
    if LNW==2: issue(18); nt+=18
    if PFM==2: e(pfi); nt+=1
    for i in range(16):
        e(f"s_waitcnt vmcnt({nt+15-i+(i if LNW==1 else 0)})")
        if i in (0,8): st(k,f"x{i}")
        for j in range(4):
            d=64+8*i+2*j
            unpack(k,d,X+4*i+j)
            if j==0: e(f"v_pk_mul_f32 v[50:51], {vr(d,2)}, {vr(d,2)}")
            else: e(f"v_pk_add_f32 v[48:49], {vr(d-2,2) if j==1 else 'v[48:49]'}, {vr(d,2)}\nv_pk_fma_f32 v[50:51], {vr(d,2)}, {vr(d,2)}, v[50:51]")
        e(f"v_add_f32 v{16+i}, v48, v49\nv_add_f32 v{32+i}, v50, v51")
        if LNW==1: issue(1)
    if LNW==1: issue(2)
    st(k,"lnsum")
    e("s_nop 1")
    for b in (16,32):
        for i in range(8): e(f"v_permlane32_swap_b32 v{b+i}, v{b+i+8}")
        for i in range(8): e(f"v_add_f32 v{b+i}, v{b+i}, v{b+i+8}")
    for b in (16,32):
        for i in range(4): e(f"v_permlane16_swap_b32 v{b+i}, v{b+i+4}")
    for b in (16,32):
        for i in range(4): e(f"v_add_f32 v{b+i}, v{b+i}, v{b+i+4}")
    for rot in (8,4,2,1):
        for b in (16,32):
            for i in range(4): e(f"v_add_f32_dpp v{b+i}, v{b+i}, v{b+i} row_ror:{rot} row_mask:0xf bank_mask:0xf")
    for i in range(4):
        e(f"v_mul_f32 v{16+i}, {f2u(1/512)}, v{16+i}\nv_mul_f32 v{32+i}, {f2u(1/512)}, v{32+i}\nv_fma_f32 v{32+i}, -v{16+i}, v{16+i}, v{32+i}\nv_max_f32 v{32+i}, 0, v{32+i}\nv_add_f32 v{32+i}, {f2u(1e-5)}, v{32+i}\nv_rsq_f32 v{32+i}, v{32+i}\ns_nop 0\nv_mul_f32 v{16+i}, v{16+i}, v{32+i}")
    e("s_nop 1")
    for i in range(16):
        q=((i>>2)&1)+2*(i>>3)
        e(f"v_readlane_b32 s{41+(i&1)*2}, v{16+(i&3)}, {16*q}\nv_readlane_b32 s{40+(i&1)*2}, v{32+(i&3)}, {16*q}\ns_nop 0\nv_mov_b32 v48, s{41+(i&1)*2}")
        for j in range(4): e(f"v_pk_fma_f32 {vr(64+8*i+2*j,2)}, {vr(64+8*i+2*j,2)}, {sr(40+(i&1)*2,2)}, v[48:49] op_sel_hi:[1,0,0] neg_lo:[0,0,1] neg_hi:[0,0,1]")
    e("v_and_b32 v10, 7, v1\ns_and_b32 s30, s4, 1\ns_lshl_b32 s30, s30, 8\ns_lshr_b32 s31, s4, 1\ns_lshl_b32 s31, s31, 15\ns_add_u32 s30, s30, s31\nv_lshlrev_b32 v10, 4, v10\nv_lshl_add_u32 v10, v1, 9, v10\nv_add_u32 v10, s30, v10")
    e("v_lshrrev_b32 v11, 5, v1\nv_and_b32 v12, 31, v1\nv_xor_b32 v12, v12, v11\nv_lshlrev_b32 v12, 4, v12\nv_lshl_add_u32 v12, v11, 9, v12\nv_add_u32 v12, s31, v12")
    for i in range(1,4): e(f"v_xor_b32 v{12+i}, {32*i}, v12")
    e("v_bfe_u32 v8, v1, 2, 2\nv_lshl_add_u32 v8, v11, 3, v8\nv_lshlrev_b32 v8, 7, v8\nv_and_b32 v9, 3, v1\nv_lshl_add_u32 v8, v9, 3, v8\nv_bfe_u32 v9, v1, 4, 1\nv_lshl_add_u32 v8, v9, 5, v8")
    e(f"v_bfe_u32 v9, v1, 3, 1\ns_and_b32 s30, s4, 1\nv_xor_b32 v9, s30, v9\nv_lshl_add_u32 v8, v9, 6, v8\nv_add_u32 v8, {WR}, v8\nv_add_u32 v9, 36864, v8\ns_lshl_b32 s30, s4, 10\nv_add_u32 v6, s30, v2\nv_lshlrev_b32 v5, 5, v1\nv_add_u32 v5, 155648, v5")
    st(k,'lndone')
    if LNW==0: issue(18)
    if PFM==3: e(pfi.replace('v9,','v61,').replace('s[40:43]','s[52:55]'))
    if JAS==-1: jobA_issue(T)
    st(k,'wiss')
    modfin(k)
    poll(k,[(6,WS_MP+q*24576+a*4096,1) for a in range(2) for q in range(4)],192,True); T.done['vm']=len(T.q['vm'])
    st(k,'modok')
    for a in range(2):
        for x in range(2):
            r=192+16*a+x
            e(f"v_add_f32 v{r}, v{r}, v{r+4}\nv_add_f32 v{r+8}, v{r+8}, v{r+12}\nv_add_f32 v{16+2*a+x}, v{r}, v{r+8}")
        e(f"v_cvt_pk_bf16_f32 v11, v{16+2*a}, v{17+2*a}"); unpack(k,16+2*a,11)
    e("v_add_f32 v18, 1.0, v18\nv_add_f32 v19, 1.0, v19\nv_cvt_pk_bf16_f32 v11, v18, v19"); unpack(k,18,11)
    e("v_lshrrev_b32 v6, 1, v6\nv_add_u32 v6, 155648, v6\nds_write_b64 v6, v[16:17]\nds_write_b64 v6, v[18:19] offset:2048\ns_waitcnt lgkmcnt(0)\ns_barrier")
    for a in range(2):
        for hf in range(2): e(f"ds_read_b128 {vr(16+8*a+4*hf,4)}, v5 offset:{a*2048+hf*16}")
    e("s_waitcnt lgkmcnt(0)")
    for i in range(16):
        for j in range(4): e(f"v_pk_fma_f32 {vr(64+8*i+2*j,2)}, {vr(64+8*i+2*j,2)}, {vr(24+2*j,2)}, {vr(16+2*j,2)}")
        for j in range(4): e(f"v_cvt_pk_bf16_f32 v{64+8*i+j}, v{64+8*i+2*j}, v{64+8*i+2*j+1}")
        e(f"v_xor_b32 v11, {(i&7)*16}, v10\nds_write_b128 v11, {vr(64+8*i,4)} offset:{(i>>3)*128}")
    e("s_waitcnt lgkmcnt(0)\ns_barrier")
    st(k,'hready')
    ACC=64; FR=16
    def rd(s):
        f=FR+16*(s%3); o=(s%12)*6144; va=8 if o<36864 else 9; o%=36864
        L=[f"ds_read_b128 {vr(f,4)}, v{12+(s&3)} offset:{s*1024}"]
        for p in range(3): L+=[f"ds_read_b64_tr_b16 {vr(f+4+4*p+2*x,2)}, v{va} offset:{o+p*2048+x*512}" for x in range(2)]
        return L
    for s in range(2):
        for x in rd(s): T.op('lg',x,('b',s))
    for s in range(32):
        if s+2<32 and s%2==0 and s>0:
            g=(s+2)//2
            if g>=6: T.wait('vm',('w',g))
            e("s_barrier")
        if s==JAF:
            T.wait('vm','j'); job_finish(k,'A',112); T.log('vm','js',4); T.done['lg']=len(T.q['lg'])
        L=rd(s+2) if s+2<32 else []
        T.wait('lg',('b',s))
        f=FR+16*(s%3)
        for p in range(3):
            b=vr(f+4+4*p,4); h=vr(f,4); d=vr(ACC+16*p,16); c='0' if s==0 else d
            e(f"v_mfma_f32_32x32x16_bf16 {d}, {b}, {h}, {c}" if p<2 else f"v_mfma_f32_32x32x16_bf16 {d}, {h}, {b}, {c}")
            for _ in range(3 if p==0 else 2):
                if L: T.op('lg',L.pop(0),('b',s+2))
            if s>=2 and s%2==0: issue(1)
            if s==JAS and p==2: jobA_issue(T); T.done['lg']=len(T.q['lg'])
    st(k,"gemm1")
    e("s_lshl_b32 s16, s5, 1\ns_lshr_b32 s17, s4, 1\ns_add_u32 s16, s16, s17\ns_lshl_b32 s17, s6, 1\ns_and_b32 s18, s4, 1\ns_add_u32 s17, s17, s18")
    e(f"s_lshl_b32 s17, s17, 17\ns_lshl_b32 s18, s16, 10\ns_add_u32 s17, s17, s18\ns_add_u32 s19, s17, s18\ns_add_u32 s19, s19, {WS_V}\ns_mov_b32 s22, {f2u(QSCALE)}\ns_nop 1")
    e("s_and_b32 s30, s4, 1\ns_lshl_b32 s30, s30, 12\ns_lshr_b32 s31, s4, 1\ns_lshl_b32 s31, s31, 10\ns_add_u32 s30, s30, s31\ns_add_u32 s30, s30, 155648\nv_add_u32 v40, s30, v2")
    for p in (1,2,0):
        if p==0:
            for r in range(16): e(f"v_mul_f32 v{ACC+r}, s22, v{ACC+r}")
        for hh in range(2):
            d=16+(2*p+hh)*4
            for j in range(4): e(f"v_cvt_pk_bf16_f32 v{d+j}, v{ACC+16*p+8*hh+2*j}, v{ACC+16*p+8*hh+2*j+1}")
            if p==0: e(f"ds_write_b128 v40, {vr(d,4)} offset:{hh*2048}")
            elif p<2: e(f"s_add_u32 s20, s17, {(WS_Q,WS_K)[p]+hh*65536}\nbuffer_store_dwordx4 {vr(d,4)}, v2, s[12:15], s20 offen {SC}")
            else: e(f"buffer_store_dwordx4 {vr(d,4)}, v2, s[12:15], s19 offen offset:{hh*1024} {SC}")
    st(k,'p1end')
    p2_setup(k)
    e('s_waitcnt lgkmcnt(0)')
    publish(k,F1); flag(k,FA,'s2')

def job_issue(k,rnd,jb):
    e=lambda x: k.e(x.replace('v60','v172').replace('v61','v173').replace('v62','v174') if rnd=='A' and JAS>=0 else x.replace('v62','v59'))
    e(f"v_lshrrev_b32 v60, 3, v1\nv_and_b32 v61, 7, v1\nv_lshlrev_b32 v61, 4, v61\nv_and_b32 v62, 16, v1\nv_lshlrev_b32 v62, 2, v62\nv_xor_b32 v61, v61, v62\ns_lshl_b32 s56, s4, 12\ns_add_u32 s56, s56, {jb}")
    if rnd=='A':
        e("s_cmp_ge_u32 s2, 224\ns_cbranch_scc1 JI_A1")
        k.srds([('wg',48),('wu',52)])
        e("s_lshr_b32 s57, s2, 3\ns_and_b32 s58, s2, 7\ns_lshl_b32 s58, s58, 2\ns_add_u32 s58, s58, s4")
        e(f"v_mul_u32_u24 v60, 3584, v60\nv_xor_b32 v62, 32, v61\nv_add_u32 v62, v60, v62\nv_add_u32 v60, v60, v61\ns_mul_i32 s59, s58, {16*3584}\ns_lshl_b32 s60, s57, 7\ns_add_u32 s59, s59, s60\ns_add_u32 s60, s59, {8*3584}\ns_waitcnt lgkmcnt(0)")
        for m in range(2):
            for hf in range(2): e(f"s_add_u32 m0, s56, {m*2048+hf*1024}\ns_nop 0\nbuffer_load_dwordx4 v{60+2*m}, {sr(48+4*m,4)}, s{59+hf} offen lds")
        for b in range(4):
            e(f"s_lshl_b32 s59, s57, 2\ns_add_u32 s59, s59, {b}\ns_mul_i32 s60, s59, 9363\ns_lshr_b32 s60, s60, 16\ns_mul_i32 s61, s60, 7\ns_sub_u32 s59, s59, s61")
            e(f"s_lshl_b32 s61, s58, 2\ns_mul_i32 s62, s58, 3\ns_add_u32 s62, s62, 124\ns_cmp_lt_u32 s59, 4\ns_cselect_b32 s61, s61, s62\ns_add_u32 s61, s61, s59\ns_mul_i32 s60, s60, 224\ns_add_u32 s61, s61, s60\ns_lshl_b32 s61, s61, 10\ns_add_u32 s{44+b}, s61, {WS_WGU}")
        e("s_branch JI_A2\nJI_A1:")
    else: e("s_cmp_ge_u32 s2, 112\ns_cbranch_scc1 JI_B2")
    nm,base,blk,sub=(('wo',WS_WO,32768,224) if rnd=='A' else ('wd',WS_WD,114688,0))
    k.srds([(nm,48)])
    e(f"s_sub_u32 s57, s2, {sub}\ns_and_b32 s58, s57, 7\ns_lshr_b32 s57, s57, 3\ns_lshl_b32 s57, s57, 3\ns_lshl_b32 s59, s4, 1\ns_add_u32 s57, s57, s59")
    e(f"s_mul_i32 s44, s58, {2*blk}\ns_lshl_b32 s59, s57, 10\ns_add_u32 s44, s44, s59\ns_add_u32 s44, s44, {base}\ns_add_u32 s45, s44, {blk}\ns_add_u32 s46, s44, 1024\ns_add_u32 s47, s45, 1024")
    e("s_lshl_b32 s59, s57, 14\ns_lshl_b32 s60, s58, 7\ns_add_u32 s59, s59, s60\nv_lshl_add_u32 v60, v60, 10, v61\ns_waitcnt lgkmcnt(0)")
    for i in range(4): e(f"s_add_u32 m0, s56, {i*1024}\ns_nop 0\nbuffer_load_dwordx4 v60, s[48:51], s59 offen lds\ns_add_u32 s59, s59, 8192")
    e(f"JI_{rnd}2:")
def job_finish(k,rnd,sh=0):
    e=lambda x: k.e(re.sub(r'\bv\[?(\d+)(:(\d+)\])?',lambda m: m.group(0) if int(m.group(1))<16 else (f'v[{int(m.group(1))+sh}:{int(m.group(3))+sh}]' if m.group(2) else f'v{int(m.group(1))+sh}'),x))
    if rnd=='B': e("s_cmp_ge_u32 s2, 112\ns_cbranch_scc1 JF_B9")
    e("v_lshrrev_b32 v36, 5, v1\nv_bfe_u32 v37, v1, 2, 2\nv_bfe_u32 v38, v1, 4, 1\nv_and_b32 v39, 3, v1\nv_bfe_u32 v40, v1, 3, 1")
    e("v_lshlrev_b32 v32, 7, v37\nv_lshl_add_u32 v32, v39, 3, v32\nv_lshl_add_u32 v32, v38, 5, v32\nv_lshl_add_u32 v32, v40, 6, v32\nv_lshl_add_u32 v32, v36, 9, v32\nv_add_u32 v32, s56, v32")
    e("v_xor_b32 v33, 64, v32\nv_add_u32 v34, 2048, v32\nv_add_u32 v35, 2048, v33")
    if rnd=='A':
        e("s_cmp_ge_u32 s2, 224\ns_cbranch_scc1 JF_A1\nv_lshl_add_u32 v32, v38, 11, v32\nv_xor_b32 v33, 32, v32\nv_xor_b32 v34, 64, v32\nv_xor_b32 v35, 96, v32\nJF_A1:")
    for b in range(4): e(f"ds_read_b64_tr_b16 {vr(16+4*b,2)}, v{32+b}\nds_read_b64_tr_b16 {vr(18+4*b,2)}, v{32+b} offset:1024")
    e("s_waitcnt lgkmcnt(0)")
    for b in range(4): e(f"buffer_store_dwordx4 {vr(16+4*b,4)}, v2, s[12:15], s{44+b} offen {SC}")
    if rnd=='B': e("JF_B9:")
def modfin(k):
    e=k.e
    e("s_cmp_lt_u32 s2, 224\ns_cbranch_scc1 MF9\ns_cmp_lg_u32 s4, 0\ns_cbranch_scc1 MF9")
    e("s_sub_u32 s30, s2, 208\nv_and_b32 v36, 31, v1\nv_lshlrev_b32 v36, 4, v36\ns_lshl_b32 s31, s30, 9\nv_add_u32 v36, s31, v36")
    poll(k,[(36,WS_MP+q*24576,1) for q in range(4)],40,True)
    e("s_lshr_b32 s30, s30, 3\ns_cmp_eq_u32 s30, 4\ns_cselect_b32 s30, 1.0, 0\nv_lshrrev_b32 v36, 1, v36")
    for x in range(2): e(f"v_add_f32 v{40+x}, v{40+x}, v{44+x}\nv_add_f32 v{48+x}, v{48+x}, v{52+x}\nv_add_f32 v{38+x}, v{40+x}, v{48+x}")
    e("v_cvt_pk_bf16_f32 v37, v38, v39"); unpack(k,38,37)
    e("v_add_f32 v38, s30, v38\nv_add_f32 v39, s30, v39\nv_cvt_pk_bf16_f32 v37, v38, v39"); unpack(k,38,37)
    e(f"buffer_store_dwordx2 v[38:39], v36, s[12:15], 0 offen {SC}\nMF9:")
def p2_setup(k):
    e=k.e; MK=240
    e("v_mov_b32 v8, 0x3f803f80")
    for r in range(48,128): e(f"v_accvgpr_write_b32 a{r}, v8")
    e("v_and_b32 v8, 31, v1\nv_lshrrev_b32 v9, 5, v1\nv_lshlrev_b32 v9, 2, v9\nv_sub_u32 v14, v8, v9\nv_mov_b32 v8, 0xffff\nv_mov_b32 v9, 0xffff0000")
    for r in range(8):
        c=lambda x: 8*(x>>2)+(x&3)
        e(f"v_cmp_le_i32 vcc, {c(2*r)}, v14\nv_cmp_le_i32 s[30:31], {c(2*r+1)}, v14\ns_nop 0\nv_cndmask_b32 v10, 0, v8, vcc\nv_cndmask_b32 v11, 0, v9, s[30:31]\nv_or_b32 v{MK+r}, v10, v11")
    e("s_lshl_b32 s19, s5, 1\ns_lshl_b32 s20, s6, 2\ns_add_u32 s20, s20, s4")
    e(f"s_lshl_b32 s21, s20, 16\ns_lshl_b32 s22, s19, 10\ns_add_u32 s22, s22, s21\ns_add_u32 s22, s22, {WS_Q}\ns_add_u32 s21, s21, {WS_K}")
    e(f"s_lshr_b32 s23, s20, 1\ns_lshl_b32 s23, s23, 17\ns_and_b32 s24, s4, 1\ns_lshl_b32 s24, s24, 8\ns_add_u32 s23, s23, s24\ns_add_u32 s23, s23, {WS_V}")
    e("v_min_u32 v8, 4, v1\nv_sub_u32 v8, s5, v8\nv_max_i32 v8, 0, v8\nv_lshlrev_b32 v8, 6, v8\ns_lshl_b32 s30, s6, 3\nv_add_u32 v8, s30, v8")
def p2(k,after_loads,mid):
    e=k.e; T=Trk(k)
    S=64; O=208; NM=224; MK=240; PF=[]; npf=[0]
    st(k,'p2pre')
    e("s_lshl_b32 s30, s4, 11\ns_add_u32 s30, s30, 155648\nv_add_u32 v9, s30, v2\nds_read_b128 a[0:3], v9\nds_read_b128 a[4:7], v9 offset:1024")
    poll(k,[(8,WS_FL+F1*2048,0)],248,one=True); e("s_waitcnt lgkmcnt(0)")
    st(k,'f1ok')
    for i in range(5):
        e(f"s_add_i32 s28, s19, {2*i-8}\ns_max_i32 s28, s28, 0\ns_lshl_b32 s29, s28, 10\ns_add_u32 s30, s29, s21")
        for x in range(2): T.op('vm',f"buffer_load_dwordx4 {vr(8+8*i+4*x,4,'a')}, v2, s[12:15], s30 offen offset:{x*1024} {SC}",'k')
    VL=[]
    for i in range(5):
        for x in range(4): VL.append((f"s_add_i32 s28, s19, {2*i-8}\ns_max_i32 s28, s28, 0\ns_lshl_b32 s29, s28, 11\ns_add_u32 s30, s29, s23\n" if x==0 else "")+f"s_mov_b64 exec, s[26:27]\nbuffer_load_dwordx4 {vr(48+16*i+4*x,4,'a')}, v2, s[12:15], s30 offen offset:{x*1024} {SC}\ns_mov_b64 exec, -1")
    e("s_mov_b32 s26, 0xffff\ns_mov_b32 s27, 0xffff")
    for _ in range(8): T.op('vm',VL.pop(0),'v')
    e("s_and_b32 s40, s5, 1\ns_lshl_b32 s40, s40, 3\ns_add_u32 s40, s40, s6\ns_mul_i32 s31, s40, 7\ns_lshr_b32 s31, s31, 2\ns_lshl_b32 s31, s31, 3\ns_sub_u32 s31, s31, 32\nv_min_u32 v15, 55, v1\nv_add_u32 v15, s31, v15\nv_add_u32 v13, 224, v1\nv_cmp_gt_u32 vcc, 32, v1\ns_nop 1\nv_cndmask_b32 v15, v15, v13, vcc\nv_lshlrev_b32 v15, 3, v15")
    e(f"s_lshl_b32 s25, s19, 15\ns_lshl_b32 s21, s20, 10\ns_add_u32 s25, s25, s21\ns_add_u32 s25, s25, {WS_O}")
    st(k,'p2iss'); T.wait('vm','k'); st(k,'p2k')
    for it in range(2):
        Q=vr(4*it,4,'a'); Kf=lambda t: vr(8+4*(t+it),4,'a'); Vf=lambda f: vr(48+8*it+4*f,4,'a')
        e(f"v_mfma_f32_32x32x16_bf16 {vr(S+128,16)}, {Kf(8)}, {Q}, 0")
        for t in range(8):
            e(f"s_cmp_lt_u32 s19, {8-t-it}\ns_cbranch_scc1 P2F{it}{t}\nv_mfma_f32_32x32x16_bf16 {vr(S+16*t,16)}, {Kf(t)}, {Q}, 0\nP2N{it}{t}:")
        for r in range(16): e(f"v_cmp_le_i32 vcc, {8*(r>>2)+(r&3)}, v14\ns_nop 1\nv_cndmask_b32 v{S+r}, v{S+r}, v{S+128+r}, vcc" if False else f"v_cmp_le_i32 {sr(32+2*(r&3),2)}, {8*(r>>2)+(r&3)}, v14"+("".join(f"\nv_cndmask_b32 v{S+r-3+x}, v{S+r-3+x}, v{S+125+r+x}, {sr(32+2*x,2)}" for x in range(4)) if r&3==3 else ""))
        e(f"v_max3_f32 v8, v{S}, v{S+1}, v{S+2}\nv_max3_f32 v9, v{S+3}, v{S+4}, v{S+5}")
        for r in range(6,126,4):
            e(f"v_max3_f32 v8, v8, v{S+r}, v{S+r+1}\nv_max3_f32 v9, v9, v{S+r+2}, v{S+r+3}")
            if VL and r%8==6: e(VL.pop(0))
            elif it==1 and PF and r%16==6: e(PF.pop(0))
        if it==0: e(f"s_mov_b32 s98, {WS_FL+FA*2048}\nbuffer_load_dwordx2 v[16:17], v15, s[12:15], s98 offen {SC}")
        e(f"v_max3_f32 v8, v8, v{S+126}, v{S+127}\nv_max_f32 v8, v8, v9\nv_mov_b32 v9, v8\ns_nop 1\nv_permlane32_swap_b32 v8, v9\nv_max_f32 v8, v8, v9")
        for r in range(16): e(f"v_sub_f32 v{NM+r}, 0, v8")
        def re(t): e(f"s_cmp_lt_u32 s19, {8-t-it}\ns_cbranch_scc1 P2S{it}{t}\nv_mfma_f32_32x32x16_bf16 {vr(S+16*t,16)}, {Kf(t)}, {Q}, {vr(NM,16)}\nP2S{it}{t}:")
        st(k,f'p2max{it}'); re(1)
        for r in range(16): e(f"v_sub_f32 v{S+r}, v{S+r}, v8")
        first=[True]
        def pv(f,b):
            e(f"v_mfma_f32_32x32x16_bf16 {vr(O,16)}, {Vf(f)}, {vr(b,4)}, {'0' if first[0] else vr(O,16)}"); first[0]=False
        pend=[]
        for t in range(8):
            b=S+16*t
            for hf in range(2):
                for r in range(8*hf,8*hf+8):
                    e(f"v_exp_f32 v{b+r}, v{b+r}")
                    if r==8*hf+1 and pend: pv(*pend.pop(0))
                    if r==5 and 2<=t+2<8: re(t+2)
                    if r==13 and len(pend)>1: pv(*pend.pop(0))
                    if r%PFR==0 and PF and (it==1 or t>=PFS): e(PF.pop(0)); npf[0]+=1
                    if it==1 and t==4 and r==0: e(f's_waitcnt vmcnt({npf[0]})'); job_finish(k,'B',16)
                if hf==0 or t>0: e("s_nop 0")
                else: e("s_nop 0")
                for j in range(4): e(f"v_cvt_pk_bf16_f32 v{b+4*hf+j}, v{b+8*hf+2*j}, v{b+8*hf+2*j+1}")
                if t>0: pend.append((2*t+hf,b+4*hf))
            if t==0:
                for j in range(8): e(f"v_and_b32 v{S+8+j}, v{MK+j}, v{S+j}\nv_xor_b32 v{S+j}, v{S+8+j}, v{S+j}")
                pend+=[(0,S),(1,S+4),(16,S+8),(17,S+12)]
                if it==0:
                    e("s_waitcnt vmcnt(0)"); st(k,'p2v0')
                    e("v_cmp_ne_u64 vcc, s[96:97], v[16:17]\ns_cmp_eq_u64 vcc, 0\ns_cbranch_scc1 FAOK"); poll(k,[(15,WS_FL+FA*2048,0)],16); e("FAOK:")
                    st(k,'faok'); after_loads(T); PF=mid()
        e("s_nop 1")
        while pend: pv(*pend.pop(0))
        st(k,f'p2exp{it}')
        e(f"s_nop 7\ns_nop 3\nv_rcp_f32 v8, v{O+8}\ns_nop 0")
        for r in range(8): e(f"v_mul_f32 v{O+r}, v{O+r}, v8")
        for j in range(4): e(f"v_cvt_pk_bf16_f32 v{24+4*it+j}, v{O+2*j}, v{O+2*j+1}")
        if it==1:
            for x in PF: e(x)
        e(f"buffer_store_dwordx4 {vr(24+4*it,4)}, v2, s[12:15], s25 offen {SC}\ns_add_u32 s25, s25, 32768")
    st(k,'p2end')
    publish(k,F2); flag(k,FB,'s2')
def p2_cold(k):
    for it in range(2):
        for t in range(8):
            k.e(f"P2F{it}{t}:")
            for r in range(16): k.e(f"v_mov_b32 v{64+16*t+r}, {f2u(-1e30)}")
            k.e(f"s_branch P2N{it}{t}")
    k.e("PK_LAST:\ns_endpgm")
```

```python
from common import *
import re
WS_FL=0x90000; WS_NONCE=WS_FL+0x8000; WS_MP=0xA0000
FM,F1,FA,F2,FB,F3,F4,F4A,FC=range(9)
SC="sc1"
QSCALE=0.25*1.4426950408889634
LNW=int(os.environ.get('LNW','0'))
CT=int(os.environ.get('CT','2'))
JAS=int(os.environ.get('JAS','0')); JAF=int(os.environ.get('JAF','23'))
PFS=int(os.environ.get('PFS','6'))
TL=int(os.environ.get('TL','0'))
uid=[0]; PFR=int(os.environ.get('PFR','5'))
MAP=int(os.environ.get('MAP','0')); PFM=int(os.environ.get('PFM','5'))
def publish(k,ph,idx='s7',drain=True):
    e=k.e; uid[0]+=1
    e("s_waitcnt vmcnt(0)"); st(k,f"dr{ph}"); e("s_barrier"); flag(k,ph,idx)
def flag(k,ph,idx):
    e=k.e; uid[0]+=1
    e(f"s_cmp_lg_u32 s4, 0\ns_cbranch_scc1 PB{uid[0]}")
    e(f"s_lshl_b32 s98, {idx}, 3\ns_add_u32 s98, s98, {WS_FL+ph*2048}\nv_mov_b32 v252, s96\nv_mov_b32 v253, s97\nv_mov_b32 v254, 0\ns_mov_b64 exec, 1\nbuffer_store_dwordx2 v[252:253], v254, s[12:15], s98 offen {SC}\ns_mov_b64 exec, -1\nPB{uid[0]}:")
SL=int(os.environ.get('SL','4')); SLG=int(os.environ.get('SLG','8'))
def poll(k,items,r0=240,gran=False,one=False):
    e=k.e; uid[0]+=1; u=uid[0]
    if one: e(f"s_cmp_lg_u32 s4, 0\ns_cbranch_scc1 PD{u}")
    e(f"s_mov_b32 s99, 0\nPL{u}:")
    r=r0; regs=[]
    for va,so,wide in items:
        n=4 if wide else 2
        e(f"s_mov_b32 s98, {so}\nbuffer_load_dwordx{n} {vr(r,n)}, v{va}, s[12:15], s98 offen {SC}")
        regs+=[r+2] if gran else [r+2*i for i in range(n//2)]; r+=4
    e("s_add_u32 s99, s99, 1\ns_waitcnt vmcnt(0)")
    for i,q in enumerate(regs):
        e(f"v_cmp_ne_u64 {'vcc' if i==0 else 's[100:101]'}, s[96:97], {vr(q,2)}")
        if i: e("s_or_b64 vcc, vcc, s[100:101]")
    e(f"s_cmp_eq_u64 vcc, 0\ns_cbranch_scc1 PD{u}\ns_sleep {SLG if gran else SL}\ns_cmp_lt_u32 s99, 50000\ns_cbranch_scc1 PL{u}\nPD{u}:")
    if one: e("s_waitcnt vmcnt(0)\ns_barrier")
TM=int(os.environ.get('TM','0'))
def touch(k,bit,base,idx,istr,u,ustr,wstr,nl,extra=(0,),vt=3,vd=255):
    if not TM&bit: return
    k.e(f"{u}\ns_mul_i32 s98, s98, {ustr}\ns_mul_i32 s99, {idx}, {istr}\ns_add_u32 s98, s98, s99\ns_mul_i32 s99, s4, {wstr}\ns_add_u32 s98, s98, s99\nv_min_u32 v{vt}, {nl-1}, v1\nv_lshlrev_b32 v{vt}, 7, v{vt}")
    for x in extra: k.e(f"s_add_u32 s99, s98, {base+x}\nbuffer_load_dword v{vd}, v{vt}, s[12:15], s99 offen {SC}")
def allflags(ph): return [(2,WS_FL+ph*2048,1),(2,WS_FL+ph*2048+1024,1)]
JB=139264
WR=65536
def p1(k,jobA_issue):
    e=k.e; T=Trk(k)
    e("s_cmp_ge_u32 s2, 16\ns_cbranch_scc1 PK_FIRST\ns_getpc_b64 s[38:39]\ns_lshr_b32 s30, s2, 3\ns_lshl_b32 s30, s30, 15\nv_lshlrev_b32 v10, 7, v0\nv_add_u32 v10, s30, v10\nv_min_u32 v10, PK_LAST-PK_FIRST, v10\nv_mov_b32 v11, s39\nv_add_co_u32 v10, vcc, s38, v10\nv_addc_co_u32 v11, vcc, 0, v11, vcc\nglobal_load_dword v63, v[10:11], off\nPK_FIRST:")
    k.srds([('ws',12),('x',8),('c',16),('wm',20),('wqkv',24)])
    lane_setup(k,1,4)
    if MAP==0:
        e("s_and_b32 s5, s2, 6\ns_lshl_b32 s5, s5, 2\ns_lshr_b32 s6, s2, 5\ns_add_u32 s5, s5, s6")
        e("s_and_b32 s6, s2, 1\ns_lshl_b32 s6, s6, 2\ns_bfe_u32 s7, s2, 0x20003\ns_add_u32 s6, s6, s7")
    else:
        e("s_and_b32 s5, s2, 7\ns_lshl_b32 s5, s5, 2\ns_lshr_b32 s6, s2, 6\ns_add_u32 s5, s5, s6\ns_bfe_u32 s6, s2, 0x30003")
    e("s_lshl_b32 s7, s5, 3\ns_add_u32 s7, s7, s6")
    e("v_lshlrev_b32 v2, 4, v1\nv_lshrrev_b32 v3, 3, v1\nv_and_b32 v4, 7, v1\nv_lshlrev_b32 v4, 4, v4")
    e("s_movk_i32 s28, 6144\nv_mul_lo_u32 v5, v3, s28\nv_add_u32 v5, v5, v4\nv_lshlrev_b32 v6, 1, v3")
    e("s_and_b32 s29, s2, 3\ns_lshl_b32 s29, s29, 2\ns_add_u32 s29, s29, s4\ns_lshl_b32 s30, s29, 6\ns_mul_i32 s29, s29, 196608\ns_lshr_b32 s31, s2, 2\ns_lshl_b32 s31, s31, 7\ns_add_u32 s29, s29, s31")
    e("s_cmp_lt_u32 s2, 192\ns_cselect_b32 s29, s29, 0x7f000000")
    e("s_lshl_b32 s32, s5, 16\ns_lshl_b32 s33, s4, 14\ns_add_u32 s32, s32, s33")
    e("v_and_b32 v7, 16, v1\nv_lshlrev_b32 v7, 2, v7\nv_xor_b32 v7, v7, v4\nv_mul_u32_u24 v8, 3072, v3\nv_add_u32 v7, v7, v8")
    e(f"s_mul_i32 s34, s4, {8*3072}\ns_lshl_b32 s35, s6, 7\ns_add_u32 s34, s34, s35\ns_lshr_b32 s35, s4, 1\ns_mul_i32 s35, s35, 6144\ns_and_b32 s36, s4, 1\ns_lshl_b32 s36, s36, 10\ns_add_u32 s35, s35, s36\ns_add_u32 s35, s35, {WR}")
    e(f"s_waitcnt lgkmcnt(0)\ns_load_dwordx2 s[96:97], s[12:13], {WS_NONCE}")
    for i in range(4): T.op('vm',f"buffer_load_dwordx4 {vr(16+4*i,4)}, v5, s[20:23], s29 offen\ns_add_u32 s29, s29, 49152",'m')
    for i in range(4): T.op('vm',f"buffer_load_ushort v{12+i}, v6, s[16:19], s30 offen offset:{16*i}",'m')
    X=192; st(k,"karg")
    for i in range(16): e(f"buffer_load_dwordx4 {vr(X+4*i,4)}, v2, s[8:11], s32 offen offset:{(i&3)*1024}"+("\ns_add_u32 s32, s32, 4096" if i&3==3 else ""))
    def wst(g):
        return [(f"s_add_u32 m0, s35, {(g%6)*12288+p*2048}\ns_add_u32 s37, s34, {p*1024}\nbuffer_load_dwordx4 v7, s[24:27], s37 offen lds"+(f"\ns_add_u32 s34, s34, {32*3072}" if p==2 else ""),('w',g)) for p in range(3)]
    WQ_=[]
    for g in range(16): WQ_+=wst(g)
    def issue(n):
        for _ in range(n):
            if WQ_:
                x,g=WQ_.pop(0); T.op('vm',x,g)
    nt=1
    pfi="buffer_load_dword v62, v9, s[40:43], s44 offen"
    if PFM==1: e(pfi)
    elif PFM>=2: e(f"v_mul_u32_u24 v10, 3072, v1\ns_and_b32 s45, s5, 7\ns_mul_i32 s45, s45, {64*3072}\ns_lshl_b32 s33, s6, 7\ns_add_u32 s45, s45, s33\ns_min_u32 s33, s4, 2\ns_lshl_b32 s33, s33, 10\ns_add_u32 s45, s45, s33\nbuffer_load_dword v62, v10, s[24:27], s45 offen")
    else: nt=0
    if PFM==4: e(pfi); nt+=1
    if TL:
        e(f"s_lshr_b32 s30, s2, 3\ns_cmp_lg_u32 s30, 30\ns_cbranch_scc1 TL9")
        k.srds([('wg',40),('wu',44),('wd',48),('wo',52),('out',56)])
        e(f"v_lshlrev_b32 v10, 19, v1\ns_lshl_b32 s30, s4, 17\nbuffer_load_dword v61, v10, s[12:15], s30 offen\nv_lshlrev_b32 v10, 15, v1\ns_lshl_b32 s30, s4, 13\ns_waitcnt lgkmcnt(0)")
        for r in (40,44,48,52,56): e(f"buffer_load_dword v61, v10, {sr(r,4)}, s30 offen")
        e("TL9:")
    if JAS==-2: jobA_issue(T); nt+=4
    e(f"s_waitcnt vmcnt({16+nt})")
    st(k,"mdata")
    for i in range(8): e(f"v_mov_b32 v{32+i}, 0")
    for i in range(4):
        r=12+i
        e(f"v_lshlrev_b32 v{r}, 16, v{r}\nv_mul_f32 v10, {f2u(-1.4426950408889634)}, v{r}\nv_exp_f32 v10, v10\ns_nop 0\nv_add_f32 v10, 1.0, v10\nv_rcp_f32 v10, v10\ns_nop 0\nv_mul_f32 v{r}, v{r}, v10\nv_cvt_pk_bf16_f32 v{r}, v{r}, v{r}\nv_lshlrev_b32 v{r}, 16, v{r}")
        for j in range(4):
            unpack(k,10,16+4*i+j)
            e(f"v_fmac_f32 v{32+2*j}, v10, v{r}\nv_fmac_f32 v{33+2*j}, v11, v{r}")
    e("s_lshl_b32 s30, s4, 11\nv_lshlrev_b32 v10, 8, v3\nv_lshl_add_u32 v10, v4, 1, v10\nv_add_u32 v10, s30, v10\nds_write_b128 v10, v[32:35]\nds_write_b128 v10, v[36:39] offset:16")
    e("s_waitcnt lgkmcnt(0)\ns_add_u32 s96, s96, 1\ns_addc_u32 s97, s97, 0\ns_barrier\ns_cmp_lg_u32 s4, 0\ns_cbranch_scc1 P0_A\ns_cmp_ge_u32 s2, 192\ns_cbranch_scc1 P0_A")
    e("v_and_b32 v10, 31, v1\nv_lshrrev_b32 v11, 5, v1\nv_lshlrev_b32 v11, 12, v11\nv_lshl_add_u32 v11, v10, 3, v11\nv_lshlrev_b32 v10, 4, v10")
    for j in range(16): e(f"ds_read_b64 {vr(16+2*j,2)}, v11 offset:{j*256}")
    e(f"s_and_b32 s29, s2, 3\ns_mul_i32 s29, s29, 24576\ns_lshl_b32 s30, s31, 2\ns_add_u32 s29, s29, s30\ns_add_u32 s29, s29, {WS_MP}\ns_waitcnt lgkmcnt(0)")
    for sz in (16,8,4,2):
        for j in range(sz): e(f"v_add_f32 v{16+j}, v{16+j}, v{16+j+sz}")
    e(f"v_mov_b32 v18, v16\nv_mov_b32 v19, v17\ns_nop 1\nv_permlane32_swap_b32 v16, v18\nv_permlane32_swap_b32 v17, v19\nv_add_f32 v56, v16, v18\nv_add_f32 v57, v17, v19\nv_mov_b32 v58, s96\nv_mov_b32 v59, s97\nbuffer_store_dwordx4 v[56:59], v10, s[12:15], s29 offen {SC}\nP0_A:")
    st(k,'modpub')
    if LNW==2: issue(18); nt+=18
    if PFM==2: e(pfi); nt+=1
    for i in range(16):
        e(f"s_waitcnt vmcnt({nt+15-i+(i if LNW==1 else 0)})")
        if i in (0,8): st(k,f"x{i}")
        for j in range(4):
            d=64+8*i+2*j
            unpack(k,d,X+4*i+j)
            if j==0: e(f"v_pk_mul_f32 v[50:51], {vr(d,2)}, {vr(d,2)}")
            else: e(f"v_pk_add_f32 v[48:49], {vr(d-2,2) if j==1 else 'v[48:49]'}, {vr(d,2)}\nv_pk_fma_f32 v[50:51], {vr(d,2)}, {vr(d,2)}, v[50:51]")
        e(f"v_add_f32 v{16+i}, v48, v49\nv_add_f32 v{32+i}, v50, v51")
        if LNW==1: issue(1)
    if LNW==1: issue(2)
    st(k,"lnsum")
    e("s_nop 1")
    for b in (16,32):
        for i in range(8): e(f"v_permlane32_swap_b32 v{b+i}, v{b+i+8}")
        for i in range(8): e(f"v_add_f32 v{b+i}, v{b+i}, v{b+i+8}")
    for b in (16,32):
        for i in range(4): e(f"v_permlane16_swap_b32 v{b+i}, v{b+i+4}")
    for b in (16,32):
        for i in range(4): e(f"v_add_f32 v{b+i}, v{b+i}, v{b+i+4}")
    for rot in (8,4,2,1):
        for b in (16,32):
            for i in range(4): e(f"v_add_f32_dpp v{b+i}, v{b+i}, v{b+i} row_ror:{rot} row_mask:0xf bank_mask:0xf")
    for i in range(4):
        e(f"v_mul_f32 v{16+i}, {f2u(1/512)}, v{16+i}\nv_mul_f32 v{32+i}, {f2u(1/512)}, v{32+i}\nv_fma_f32 v{32+i}, -v{16+i}, v{16+i}, v{32+i}\nv_max_f32 v{32+i}, 0, v{32+i}\nv_add_f32 v{32+i}, {f2u(1e-5)}, v{32+i}\nv_rsq_f32 v{32+i}, v{32+i}\ns_nop 0\nv_mul_f32 v{16+i}, v{16+i}, v{32+i}")
    e("s_nop 1")
    for i in range(16):
        q=((i>>2)&1)+2*(i>>3)
        e(f"v_readlane_b32 s{41+(i&1)*2}, v{16+(i&3)}, {16*q}\nv_readlane_b32 s{40+(i&1)*2}, v{32+(i&3)}, {16*q}\ns_nop 0\nv_mov_b32 v48, s{41+(i&1)*2}")
        for j in range(4): e(f"v_pk_fma_f32 {vr(64+8*i+2*j,2)}, {vr(64+8*i+2*j,2)}, {sr(40+(i&1)*2,2)}, v[48:49] op_sel_hi:[1,0,0] neg_lo:[0,0,1] neg_hi:[0,0,1]")
    e("v_and_b32 v10, 7, v1\ns_and_b32 s30, s4, 1\ns_lshl_b32 s30, s30, 8\ns_lshr_b32 s31, s4, 1\ns_lshl_b32 s31, s31, 15\ns_add_u32 s30, s30, s31\nv_lshlrev_b32 v10, 4, v10\nv_lshl_add_u32 v10, v1, 9, v10\nv_add_u32 v10, s30, v10")
    e("v_lshrrev_b32 v11, 5, v1\nv_and_b32 v12, 31, v1\nv_xor_b32 v12, v12, v11\nv_lshlrev_b32 v12, 4, v12\nv_lshl_add_u32 v12, v11, 9, v12\nv_add_u32 v12, s31, v12")
    for i in range(1,4): e(f"v_xor_b32 v{12+i}, {32*i}, v12")
    e("v_bfe_u32 v8, v1, 2, 2\nv_lshl_add_u32 v8, v11, 3, v8\nv_lshlrev_b32 v8, 7, v8\nv_and_b32 v9, 3, v1\nv_lshl_add_u32 v8, v9, 3, v8\nv_bfe_u32 v9, v1, 4, 1\nv_lshl_add_u32 v8, v9, 5, v8")
    e(f"v_bfe_u32 v9, v1, 3, 1\ns_and_b32 s30, s4, 1\nv_xor_b32 v9, s30, v9\nv_lshl_add_u32 v8, v9, 6, v8\nv_add_u32 v8, {WR}, v8\nv_add_u32 v9, 36864, v8\ns_lshl_b32 s30, s4, 10\nv_add_u32 v6, s30, v2\nv_lshlrev_b32 v5, 5, v1\nv_add_u32 v5, 155648, v5")
    st(k,'lndone')
    if LNW==0: issue(18)
    if PFM==3: e(pfi.replace('v9,','v61,').replace('s[40:43]','s[52:55]'))
    if JAS==-1: jobA_issue(T)
    st(k,'wiss')
    modfin(k)
    poll(k,[(6,WS_MP+q*24576+a*4096,1) for a in range(2) for q in range(4)],192,True); T.done['vm']=len(T.q['vm'])
    st(k,'modok')
    for a in range(2):
        for x in range(2):
            r=192+16*a+x
            e(f"v_add_f32 v{r}, v{r}, v{r+4}\nv_add_f32 v{r+8}, v{r+8}, v{r+12}\nv_add_f32 v{16+2*a+x}, v{r}, v{r+8}")
        e(f"v_cvt_pk_bf16_f32 v11, v{16+2*a}, v{17+2*a}"); unpack(k,16+2*a,11)
    e("v_add_f32 v18, 1.0, v18\nv_add_f32 v19, 1.0, v19\nv_cvt_pk_bf16_f32 v11, v18, v19"); unpack(k,18,11)
    e("v_lshrrev_b32 v6, 1, v6\nv_add_u32 v6, 155648, v6\nds_write_b64 v6, v[16:17]\nds_write_b64 v6, v[18:19] offset:2048\ns_waitcnt lgkmcnt(0)\ns_barrier")
    for a in range(2):
        for hf in range(2): e(f"ds_read_b128 {vr(16+8*a+4*hf,4)}, v5 offset:{a*2048+hf*16}")
    e("s_waitcnt lgkmcnt(0)")
    for i in range(16):
        for j in range(4): e(f"v_pk_fma_f32 {vr(64+8*i+2*j,2)}, {vr(64+8*i+2*j,2)}, {vr(24+2*j,2)}, {vr(16+2*j,2)}")
        for j in range(4): e(f"v_cvt_pk_bf16_f32 v{64+8*i+j}, v{64+8*i+2*j}, v{64+8*i+2*j+1}")
        e(f"v_xor_b32 v11, {(i&7)*16}, v10\nds_write_b128 v11, {vr(64+8*i,4)} offset:{(i>>3)*128}")
    e("s_waitcnt lgkmcnt(0)\ns_barrier")
    st(k,'hready')
    ACC=64; FR=16
    def rd(s):
        f=FR+16*(s%3); o=(s%12)*6144; va=8 if o<36864 else 9; o%=36864
        L=[f"ds_read_b128 {vr(f,4)}, v{12+(s&3)} offset:{s*1024}"]
        for p in range(3): L+=[f"ds_read_b64_tr_b16 {vr(f+4+4*p+2*x,2)}, v{va} offset:{o+p*2048+x*512}" for x in range(2)]
        return L
    for s in range(2):
        for x in rd(s): T.op('lg',x,('b',s))
    for s in range(32):
        if s+2<32 and s%2==0 and s>0:
            g=(s+2)//2
            if g>=6: T.wait('vm',('w',g))
            e("s_barrier")
        if s==JAF:
            T.wait('vm','j'); job_finish(k,'A',112); T.log('vm','js',4); T.done['lg']=len(T.q['lg'])
        L=rd(s+2) if s+2<32 else []
        T.wait('lg',('b',s))
        f=FR+16*(s%3)
        for p in range(3):
            b=vr(f+4+4*p,4); h=vr(f,4); d=vr(ACC+16*p,16); c='0' if s==0 else d
            e(f"v_mfma_f32_32x32x16_bf16 {d}, {b}, {h}, {c}" if p<2 else f"v_mfma_f32_32x32x16_bf16 {d}, {h}, {b}, {c}")
            for _ in range(3 if p==0 else 2):
                if L: T.op('lg',L.pop(0),('b',s+2))
            if s>=2 and s%2==0: issue(1)
            if s==JAS and p==2: jobA_issue(T); T.done['lg']=len(T.q['lg'])
    st(k,"gemm1")
    e("s_lshl_b32 s16, s5, 1\ns_lshr_b32 s17, s4, 1\ns_add_u32 s16, s16, s17\ns_lshl_b32 s17, s6, 1\ns_and_b32 s18, s4, 1\ns_add_u32 s17, s17, s18")
    e(f"s_lshl_b32 s17, s17, 17\ns_lshl_b32 s18, s16, 10\ns_add_u32 s17, s17, s18\ns_add_u32 s19, s17, s18\ns_add_u32 s19, s19, {WS_V}\ns_mov_b32 s22, {f2u(QSCALE)}\ns_nop 1")
    e("s_and_b32 s30, s4, 1\ns_lshl_b32 s30, s30, 12\ns_lshr_b32 s31, s4, 1\ns_lshl_b32 s31, s31, 10\ns_add_u32 s30, s30, s31\ns_add_u32 s30, s30, 155648\nv_add_u32 v40, s30, v2")
    for p in (1,2,0):
        if p==0:
            for r in range(16): e(f"v_mul_f32 v{ACC+r}, s22, v{ACC+r}")
        for hh in range(2):
            d=16+(2*p+hh)*4
            for j in range(4): e(f"v_cvt_pk_bf16_f32 v{d+j}, v{ACC+16*p+8*hh+2*j}, v{ACC+16*p+8*hh+2*j+1}")
            if p==0: e(f"ds_write_b128 v40, {vr(d,4)} offset:{hh*2048}")
            elif p<2: e(f"s_add_u32 s20, s17, {(WS_Q,WS_K)[p]+hh*65536}\nbuffer_store_dwordx4 {vr(d,4)}, v2, s[12:15], s20 offen {SC}")
            else: e(f"buffer_store_dwordx4 {vr(d,4)}, v2, s[12:15], s19 offen offset:{hh*1024} {SC}")
    st(k,'p1end')
    p2_setup(k)
    e('s_waitcnt lgkmcnt(0)')
    publish(k,F1); flag(k,FA,'s2')

def job_issue(k,rnd,jb):
    e=lambda x: k.e(x.replace('v60','v172').replace('v61','v173').replace('v62','v174') if rnd=='A' and JAS>=0 else x.replace('v62','v59'))
    e(f"v_lshrrev_b32 v60, 3, v1\nv_and_b32 v61, 7, v1\nv_lshlrev_b32 v61, 4, v61\nv_and_b32 v62, 16, v1\nv_lshlrev_b32 v62, 2, v62\nv_xor_b32 v61, v61, v62\ns_lshl_b32 s56, s4, 12\ns_add_u32 s56, s56, {jb}")
    if rnd=='A':
        e("s_cmp_ge_u32 s2, 224\ns_cbranch_scc1 JI_A1")
        k.srds([('wg',48),('wu',52)])
        e("s_lshr_b32 s57, s2, 3\ns_and_b32 s58, s2, 7\ns_lshl_b32 s58, s58, 2\ns_add_u32 s58, s58, s4")
        e(f"v_mul_u32_u24 v60, 3584, v60\nv_xor_b32 v62, 32, v61\nv_add_u32 v62, v60, v62\nv_add_u32 v60, v60, v61\ns_mul_i32 s59, s58, {16*3584}\ns_lshl_b32 s60, s57, 7\ns_add_u32 s59, s59, s60\ns_add_u32 s60, s59, {8*3584}\ns_waitcnt lgkmcnt(0)")
        for m in range(2):
            for hf in range(2): e(f"s_add_u32 m0, s56, {m*2048+hf*1024}\ns_nop 0\nbuffer_load_dwordx4 v{60+2*m}, {sr(48+4*m,4)}, s{59+hf} offen lds")
        for b in range(4):
            e(f"s_lshl_b32 s59, s57, 2\ns_add_u32 s59, s59, {b}\ns_mul_i32 s60, s59, 9363\ns_lshr_b32 s60, s60, 16\ns_mul_i32 s61, s60, 7\ns_sub_u32 s59, s59, s61")
            e(f"s_lshl_b32 s61, s58, 2\ns_mul_i32 s62, s58, 3\ns_add_u32 s62, s62, 124\ns_cmp_lt_u32 s59, 4\ns_cselect_b32 s61, s61, s62\ns_add_u32 s61, s61, s59\ns_mul_i32 s60, s60, 224\ns_add_u32 s61, s61, s60\ns_lshl_b32 s61, s61, 10\ns_add_u32 s{44+b}, s61, {WS_WGU}")
        e("s_branch JI_A2\nJI_A1:")
    else: e("s_cmp_ge_u32 s2, 112\ns_cbranch_scc1 JI_B2")
    nm,base,blk,sub=(('wo',WS_WO,32768,224) if rnd=='A' else ('wd',WS_WD,114688,0))
    k.srds([(nm,48)])
    e(f"s_sub_u32 s57, s2, {sub}\ns_and_b32 s58, s57, 7\ns_lshr_b32 s57, s57, 3\ns_lshl_b32 s57, s57, 3\ns_lshl_b32 s59, s4, 1\ns_add_u32 s57, s57, s59")
    e(f"s_mul_i32 s44, s58, {2*blk}\ns_lshl_b32 s59, s57, 10\ns_add_u32 s44, s44, s59\ns_add_u32 s44, s44, {base}\ns_add_u32 s45, s44, {blk}\ns_add_u32 s46, s44, 1024\ns_add_u32 s47, s45, 1024")
    e("s_lshl_b32 s59, s57, 14\ns_lshl_b32 s60, s58, 7\ns_add_u32 s59, s59, s60\nv_lshl_add_u32 v60, v60, 10, v61\ns_waitcnt lgkmcnt(0)")
    for i in range(4): e(f"s_add_u32 m0, s56, {i*1024}\ns_nop 0\nbuffer_load_dwordx4 v60, s[48:51], s59 offen lds\ns_add_u32 s59, s59, 8192")
    e(f"JI_{rnd}2:")
def job_finish(k,rnd,sh=0):
    e=lambda x: k.e(re.sub(r'\bv\[?(\d+)(:(\d+)\])?',lambda m: m.group(0) if int(m.group(1))<16 else (f'v[{int(m.group(1))+sh}:{int(m.group(3))+sh}]' if m.group(2) else f'v{int(m.group(1))+sh}'),x))
    if rnd=='B': e("s_cmp_ge_u32 s2, 112\ns_cbranch_scc1 JF_B9")
    e("v_lshrrev_b32 v36, 5, v1\nv_bfe_u32 v37, v1, 2, 2\nv_bfe_u32 v38, v1, 4, 1\nv_and_b32 v39, 3, v1\nv_bfe_u32 v40, v1, 3, 1")
    e("v_lshlrev_b32 v32, 7, v37\nv_lshl_add_u32 v32, v39, 3, v32\nv_lshl_add_u32 v32, v38, 5, v32\nv_lshl_add_u32 v32, v40, 6, v32\nv_lshl_add_u32 v32, v36, 9, v32\nv_add_u32 v32, s56, v32")
    e("v_xor_b32 v33, 64, v32\nv_add_u32 v34, 2048, v32\nv_add_u32 v35, 2048, v33")
    if rnd=='A':
        e("s_cmp_ge_u32 s2, 224\ns_cbranch_scc1 JF_A1\nv_lshl_add_u32 v32, v38, 11, v32\nv_xor_b32 v33, 32, v32\nv_xor_b32 v34, 64, v32\nv_xor_b32 v35, 96, v32\nJF_A1:")
    for b in range(4): e(f"ds_read_b64_tr_b16 {vr(16+4*b,2)}, v{32+b}\nds_read_b64_tr_b16 {vr(18+4*b,2)}, v{32+b} offset:1024")
    e("s_waitcnt lgkmcnt(0)")
    for b in range(4): e(f"buffer_store_dwordx4 {vr(16+4*b,4)}, v2, s[12:15], s{44+b} offen {SC}")
    if rnd=='B': e("JF_B9:")
def modfin(k):
    e=k.e
    e("s_cmp_lt_u32 s2, 224\ns_cbranch_scc1 MF9\ns_cmp_lg_u32 s4, 0\ns_cbranch_scc1 MF9")
    e("s_sub_u32 s30, s2, 208\nv_and_b32 v36, 31, v1\nv_lshlrev_b32 v36, 4, v36\ns_lshl_b32 s31, s30, 9\nv_add_u32 v36, s31, v36")
    poll(k,[(36,WS_MP+q*24576,1) for q in range(4)],40,True)
    e("s_lshr_b32 s30, s30, 3\ns_cmp_eq_u32 s30, 4\ns_cselect_b32 s30, 1.0, 0\nv_lshrrev_b32 v36, 1, v36")
    for x in range(2): e(f"v_add_f32 v{40+x}, v{40+x}, v{44+x}\nv_add_f32 v{48+x}, v{48+x}, v{52+x}\nv_add_f32 v{38+x}, v{40+x}, v{48+x}")
    e("v_cvt_pk_bf16_f32 v37, v38, v39"); unpack(k,38,37)
    e("v_add_f32 v38, s30, v38\nv_add_f32 v39, s30, v39\nv_cvt_pk_bf16_f32 v37, v38, v39"); unpack(k,38,37)
    e(f"buffer_store_dwordx2 v[38:39], v36, s[12:15], 0 offen {SC}\nMF9:")
def p2_setup(k):
    e=k.e; MK=240
    e("v_mov_b32 v8, 0x3f803f80")
    for r in range(48,128): e(f"v_accvgpr_write_b32 a{r}, v8")
    e("v_and_b32 v8, 31, v1\nv_lshrrev_b32 v9, 5, v1\nv_lshlrev_b32 v9, 2, v9\nv_sub_u32 v14, v8, v9\nv_mov_b32 v8, 0xffff\nv_mov_b32 v9, 0xffff0000")
    for r in range(8):
        c=lambda x: 8*(x>>2)+(x&3)
        e(f"v_cmp_le_i32 vcc, {c(2*r)}, v14\nv_cmp_le_i32 s[30:31], {c(2*r+1)}, v14\ns_nop 0\nv_cndmask_b32 v10, 0, v8, vcc\nv_cndmask_b32 v11, 0, v9, s[30:31]\nv_or_b32 v{MK+r}, v10, v11")
    e("s_lshl_b32 s19, s5, 1\ns_lshl_b32 s20, s6, 2\ns_add_u32 s20, s20, s4")
    e(f"s_lshl_b32 s21, s20, 16\ns_lshl_b32 s22, s19, 10\ns_add_u32 s22, s22, s21\ns_add_u32 s22, s22, {WS_Q}\ns_add_u32 s21, s21, {WS_K}")
    e(f"s_lshr_b32 s23, s20, 1\ns_lshl_b32 s23, s23, 17\ns_and_b32 s24, s4, 1\ns_lshl_b32 s24, s24, 8\ns_add_u32 s23, s23, s24\ns_add_u32 s23, s23, {WS_V}")
    e("v_min_u32 v8, 4, v1\nv_sub_u32 v8, s5, v8\nv_max_i32 v8, 0, v8\nv_lshlrev_b32 v8, 6, v8\ns_lshl_b32 s30, s6, 3\nv_add_u32 v8, s30, v8")
def p2(k,after_loads,mid):
    e=k.e; T=Trk(k)
    S=64; O=208; NM=224; MK=240; PF=[]; npf=[0]
    st(k,'p2pre')
    e("s_lshl_b32 s30, s4, 11\ns_add_u32 s30, s30, 155648\nv_add_u32 v9, s30, v2\nds_read_b128 a[0:3], v9\nds_read_b128 a[4:7], v9 offset:1024")
    poll(k,[(8,WS_FL+F1*2048,0)],248,one=True); e("s_waitcnt lgkmcnt(0)")
    st(k,'f1ok')
    for i in range(5):
        e(f"s_add_i32 s28, s19, {2*i-8}\ns_max_i32 s28, s28, 0\ns_lshl_b32 s29, s28, 10\ns_add_u32 s30, s29, s21")
        for x in range(2): T.op('vm',f"buffer_load_dwordx4 {vr(8+8*i+4*x,4,'a')}, v2, s[12:15], s30 offen offset:{x*1024} {SC}",'k')
    VL=[]
    for i in range(5):
        for x in range(4): VL.append((f"s_add_i32 s28, s19, {2*i-8}\ns_max_i32 s28, s28, 0\ns_lshl_b32 s29, s28, 11\ns_add_u32 s30, s29, s23\n" if x==0 else "")+f"s_mov_b64 exec, s[26:27]\nbuffer_load_dwordx4 {vr(48+16*i+4*x,4,'a')}, v2, s[12:15], s30 offen offset:{x*1024} {SC}\ns_mov_b64 exec, -1")
    e("s_mov_b32 s26, 0xffff\ns_mov_b32 s27, 0xffff")
    for _ in range(8): T.op('vm',VL.pop(0),'v')
    e("s_and_b32 s40, s5, 1\ns_lshl_b32 s40, s40, 3\ns_add_u32 s40, s40, s6\ns_mul_i32 s31, s40, 7\ns_lshr_b32 s31, s31, 2\ns_lshl_b32 s31, s31, 3\ns_sub_u32 s31, s31, 32\nv_min_u32 v15, 55, v1\nv_add_u32 v15, s31, v15\nv_add_u32 v13, 224, v1\nv_cmp_gt_u32 vcc, 32, v1\ns_nop 1\nv_cndmask_b32 v15, v15, v13, vcc\nv_lshlrev_b32 v15, 3, v15")
    e(f"s_lshl_b32 s25, s19, 15\ns_lshl_b32 s21, s20, 10\ns_add_u32 s25, s25, s21\ns_add_u32 s25, s25, {WS_O}")
    st(k,'p2iss'); T.wait('vm','k'); st(k,'p2k')
    for it in range(2):
        Q=vr(4*it,4,'a'); Kf=lambda t: vr(8+4*(t+it),4,'a'); Vf=lambda f: vr(48+8*it+4*f,4,'a')
        e(f"v_mfma_f32_32x32x16_bf16 {vr(S+128,16)}, {Kf(8)}, {Q}, 0")
        for t in range(8):
            e(f"s_cmp_lt_u32 s19, {8-t-it}\ns_cbranch_scc1 P2F{it}{t}\nv_mfma_f32_32x32x16_bf16 {vr(S+16*t,16)}, {Kf(t)}, {Q}, 0\nP2N{it}{t}:")
        for r in range(16): e(f"v_cmp_le_i32 vcc, {8*(r>>2)+(r&3)}, v14\ns_nop 1\nv_cndmask_b32 v{S+r}, v{S+r}, v{S+128+r}, vcc" if False else f"v_cmp_le_i32 {sr(32+2*(r&3),2)}, {8*(r>>2)+(r&3)}, v14"+("".join(f"\nv_cndmask_b32 v{S+r-3+x}, v{S+r-3+x}, v{S+125+r+x}, {sr(32+2*x,2)}" for x in range(4)) if r&3==3 else ""))
        e(f"v_max3_f32 v8, v{S}, v{S+1}, v{S+2}\nv_max3_f32 v9, v{S+3}, v{S+4}, v{S+5}")
        for r in range(6,126,4):
            e(f"v_max3_f32 v8, v8, v{S+r}, v{S+r+1}\nv_max3_f32 v9, v9, v{S+r+2}, v{S+r+3}")
            if VL and r%8==6: e(VL.pop(0))
            elif it==1 and PF and r%16==6: e(PF.pop(0))
        if it==0: e(f"s_mov_b32 s98, {WS_FL+FA*2048}\nbuffer_load_dwordx2 v[16:17], v15, s[12:15], s98 offen {SC}")
        e(f"v_max3_f32 v8, v8, v{S+126}, v{S+127}\nv_max_f32 v8, v8, v9\nv_mov_b32 v9, v8\ns_nop 1\nv_permlane32_swap_b32 v8, v9\nv_max_f32 v8, v8, v9")
        for r in range(16): e(f"v_sub_f32 v{NM+r}, 0, v8")
        def re(t): e(f"s_cmp_lt_u32 s19, {8-t-it}\ns_cbranch_scc1 P2S{it}{t}\nv_mfma_f32_32x32x16_bf16 {vr(S+16*t,16)}, {Kf(t)}, {Q}, {vr(NM,16)}\nP2S{it}{t}:")
        st(k,f'p2max{it}'); re(1)
        for r in range(16): e(f"v_sub_f32 v{S+r}, v{S+r}, v8")
        first=[True]
        def pv(f,b):
            e(f"v_mfma_f32_32x32x16_bf16 {vr(O,16)}, {Vf(f)}, {vr(b,4)}, {'0' if first[0] else vr(O,16)}"); first[0]=False
        pend=[]
        for t in range(8):
            b=S+16*t
            for hf in range(2):
                for r in range(8*hf,8*hf+8):
                    e(f"v_exp_f32 v{b+r}, v{b+r}")
                    if r==8*hf+1 and pend: pv(*pend.pop(0))
                    if r==5 and 2<=t+2<8: re(t+2)
                    if r==13 and len(pend)>1: pv(*pend.pop(0))
                    if r%PFR==0 and PF and (it==1 or t>=PFS): e(PF.pop(0)); npf[0]+=1
                    if it==1 and t==4 and r==0: e(f's_waitcnt vmcnt({npf[0]})'); job_finish(k,'B',16)
                if hf==0 or t>0: e("s_nop 0")
                else: e("s_nop 0")
                for j in range(4): e(f"v_cvt_pk_bf16_f32 v{b+4*hf+j}, v{b+8*hf+2*j}, v{b+8*hf+2*j+1}")
                if t>0: pend.append((2*t+hf,b+4*hf))
            if t==0:
                for j in range(8): e(f"v_and_b32 v{S+8+j}, v{MK+j}, v{S+j}\nv_xor_b32 v{S+j}, v{S+8+j}, v{S+j}")
                pend+=[(0,S),(1,S+4),(16,S+8),(17,S+12)]
                if it==0:
                    e("s_waitcnt vmcnt(0)"); st(k,'p2v0')
                    e("v_cmp_ne_u64 vcc, s[96:97], v[16:17]\ns_cmp_eq_u64 vcc, 0\ns_cbranch_scc1 FAOK"); poll(k,[(15,WS_FL+FA*2048,0)],16); e("FAOK:")
                    st(k,'faok')
                    touch(k,1,WS_WO,'s6',65536,'s_and_b32 s98, s5, 7',8192,2048,16)
                    touch(k,2,WS_WGU,'s40',229376,'s_bfe_u32 s98, s5, 0x20001',57344,14336,56,(0,7168))
                    after_loads(T); PF=mid()
        e("s_nop 1")
        while pend: pv(*pend.pop(0))
        st(k,f'p2exp{it}')
        e(f"s_nop 7\ns_nop 3\nv_rcp_f32 v8, v{O+8}\ns_nop 0")
        for r in range(8): e(f"v_mul_f32 v{O+r}, v{O+r}, v8")
        for j in range(4): e(f"v_cvt_pk_bf16_f32 v{24+4*it+j}, v{O+2*j}, v{O+2*j+1}")
        if it==1:
            for x in PF: e(x)
        e(f"buffer_store_dwordx4 {vr(24+4*it,4)}, v2, s[12:15], s25 offen {SC}\ns_add_u32 s25, s25, 32768")
    st(k,'p2end')
    publish(k,F2); flag(k,FB,'s2')
def p2_cold(k):
    for it in range(2):
        for t in range(8):
            k.e(f"P2F{it}{t}:")
            for r in range(16): k.e(f"v_mov_b32 v{64+16*t+r}, {f2u(-1e30)}")
            k.e(f"s_branch P2N{it}{t}")
    k.e("PK_LAST:\ns_endpgm")
```

```python
from pk import *
NWD=int(os.environ.get('NWD','4')); M35=int(os.environ.get('M35','0')); ACC=16; BFR=64; LA=int(os.environ.get('LA','6')); FPOS=2*(16-LA); WS_CF=0xC0000
def ks_setup(k,ns,abase,wbase,ksteps,rbase,sa,sw):
    e=k.e
    e(f"s_mul_i32 s{sa}, s3, {2*ksteps*1024}\ns_mul_i32 s20, s4, {ns*1024}\ns_add_u32 s{sa}, s{sa}, s20\ns_add_u32 s{sa}, s{sa}, {abase}\ns_add_u32 s{sa+1}, s{sa}, {ksteps*1024}")
    e(f"s_mul_i32 s{sw}, s63, {2*ksteps*1024}\ns_add_u32 s{sw}, s{sw}, s20\ns_add_u32 s{sw}, s{sw}, {wbase}\ns_add_u32 s{sw+1}, s{sw}, {ksteps*1024}")
    e(f"s_bitcmp1_b32 s4, 1\ns_cselect_b32 s20, s{sa}, s{sa+1}\ns_cselect_b32 s{sa+1}, s{sa+1}, s{sa}\ns_mov_b32 s{sa}, s20\ns_bitcmp1_b32 s4, 0\ns_cselect_b32 s20, s{sw}, s{sw+1}\ns_cselect_b32 s{sw+1}, s{sw+1}, s{sw}\ns_mov_b32 s{sw}, s20")
def ks_pos(k,rbase,v0=4):
    e=k.e
    for i in range(4): e(f"s_xor_b32 s20, s4, {3-i}\ns_mul_i32 s20, s20, 12288\ns_add_u32 s20, s20, {rbase}\nv_add_u32 v{v0+i}, s20, v2")
    e("s_lshr_b32 s22, s4, 1\ns_lshl_b32 s21, s3, 1\ns_add_u32 s22, s22, s21\ns_and_b32 s23, s4, 1\ns_lshl_b32 s21, s63, 1\ns_add_u32 s23, s23, s21")
    e("v_and_b32 v10, 31, v1\nv_lshrrev_b32 v11, 5, v1\nv_lshlrev_b32 v10, 10, v10\nv_lshl_add_u32 v10, v11, 4, v10\nv_lshlrev_b32 v11, 4, v11")
def ld2(reg,p,sg,s):
    return [f"buffer_load_dwordx4 {vr(reg+4*i,4,p)}, v2, s[12:15], s{sg+i} offen offset:{(s&3)*1024} {SC}"+(f"\ns_add_u32 s{sg+i}, s{sg+i}, 4096" if s&3==3 else "") for i in range(2)]
def ld5(reg,p,sg,s):
    o,last=((s&3),(s&3)==3) if s<16 else ((s-16)%3,(s-16)%3==2)
    inc=7168 if s!=15 else (4096-3*7168)&0xffffffff
    return [f"buffer_load_dwordx4 {vr(reg+4*i,4,p)}, v2, s[12:15], s{sg+i} offen offset:{o*1024} {SC}"+(f"\ns_add_u32 s{sg+i}, s{sg+i}, {inc}" if last else "") for i in range(2)]
def ks_main(k,ns,sa,areg,ap,depth,wreg,post=None):
    e=k.e; T=Trk(k); Q=[]
    for s in range(ns): Q+=[(x,(s,i)) for i,x in enumerate((ld5 if ns==28 else ld2)(areg+8*(s%depth),ap,sa,s))]
    if ns==28: Q.insert(FPOS,(f"s_mov_b32 s98, {WS_FL+F4*2048}\nbuffer_load_dwordx2 v[14:15], v12, s[12:15], s98 offen {SC}",'f'))
    def issue(n):
        for _ in range(n):
            if Q:
                if Q[0][1]==(16,0) and not chk[0]: return
                x,g=Q.pop(0); T.op('vm',x,g)
                if g=='f': issue(1)
    chk=[False]
    issue(2*LA if ns==28 else 16)
    if post: post(T)
    for s in range(ns):
        a=areg+8*(s%depth)
        for t in range(2):
            if ns==28 and t==0 and s==FPOS//2:
                T.wait('vm','f'); e("v_cmp_ne_u64 vcc, s[96:97], v[14:15]\ns_cmp_eq_u64 vcc, 0\ns_cbranch_scc1 F4OK"); poll(k,[(12,WS_FL+F4*2048,0)],96); e("F4OK:"); st(k,'f4ok')
                chk[0]=True
                if TM&32: T.op('vm',f"buffer_load_dword v100, v13, s[12:15], s33 offen {SC}",'t')
            T.wait('vm',(s,t))
            if t==0 and s in (0,12): st(k,f'ks{ns}_{s}')
            for bb in range(2):
                d=vr(ACC+16*(2*t+bb),16)
                e(f"v_mfma_f32_32x32x16_bf16 {d}, {vr(wreg(s)+4*bb,4,'a')}, {vr(a+4*t,4,ap)}, {'0' if s==0 else d}")
            issue(1)
    st(k,f"ks{ns}_mm")
    if ns==8:
        for g in range(NB2,7):
            for x in b1(g): e(x)
    e("s_nop 9")
    for i in range(3):
        for qd in range(4): e(f"ds_write_b128 v7, {vr(ACC+16*i+4*qd,4)} offset:{i*4096+qd*1024}")
    e("s_waitcnt lgkmcnt(0)\ns_barrier")
    for i in range(3):
        for qd in range(4): e(f"ds_read_b128 {vr(ACC+16*i+4*qd,4)}, v{4+i} offset:{i*4096+qd*1024}")
    for i in range(3):
        for qd in range(4):
            e(f"s_waitcnt lgkmcnt({11-4*i-qd})")
            for r in range(4*qd,4*qd+4,2): e(f"v_pk_add_f32 {vr(BFR+r,2)}, {vr(BFR+r,2)}, {vr(ACC+16*i+r,2)}")
def b_issue(k,T):
    e=k.e
    job_issue(k,'B',JB)
    e("s_mov_b32 s57, 0x7f000000\ns_cmp_lt_u32 s2, 112\ns_cbranch_scc1 BI4\ns_cmp_ge_u32 s2, 224\ns_cbranch_scc1 BI4")
    e("s_sub_u32 s44, s2, 112")
    k.srds([('wg',48),('wu',52)])
    e(f"v_lshrrev_b32 v12, 2, v1\nv_and_b32 v13, 3, v1\nv_mul_u32_u24 v12, 3584, v12\nv_lshl_add_u32 v12, v13, 4, v12\ns_waitcnt lgkmcnt(0)\ns_cmp_ge_u32 s44, 56\ns_cselect_b32 s48, s52, s48\ns_cselect_b32 s49, s53, s49\ns_cselect_b32 s58, 56, 0\ns_cselect_b32 s45, 1024, 0\ns_sub_u32 s44, s44, s58")
    e(f"s_mul_i32 s58, s4, {128*3584}\ns_lshl_b32 s59, s44, 6\ns_add_u32 s58, s58, s59")
    for i in range(8): e(f"buffer_load_dwordx4 {vr(32+4*i,4)}, v12, s[48:51], s58 offen\ns_add_u32 s58, s58, {16*3584}")
    e("BI4:")
def cs_finish(k):
    e=k.e
    e(f"s_cmp_lt_u32 s2, 112\ns_cbranch_scc1 CS9\ns_cmp_ge_u32 s2, 224\ns_cbranch_scc1 CS9")
    e(f"s_lshl_b32 s57, s4, 11\ns_add_u32 s57, s57, {JB}\nv_lshlrev_b32 v12, 5, v1\nv_add_u32 v12, s57, v12")
    e("ds_write_b128 v12, v[176:179]\nds_write_b128 v12, v[180:183] offset:16\nds_write_b128 v12, v[184:187] offset:8192\nds_write_b128 v12, v[188:191] offset:8208")
    e("s_waitcnt lgkmcnt(0)\ns_barrier\ns_cmp_ge_u32 s4, 2\ns_cbranch_scc1 CS8")
    e(f"v_and_b32 v13, 31, v1\nv_lshrrev_b32 v14, 5, v1\nv_lshlrev_b32 v12, 2, v13\nv_lshl_add_u32 v12, v14, 12, v12\ns_lshl_b32 s57, s4, 13\ns_add_u32 s57, s57, {JB}\nv_add_u32 v12, s57, v12")
    for j in range(32): e(f"ds_read_b32 v{16+j}, v12 offset:{j*128}")
    e("s_waitcnt lgkmcnt(0)")
    for sz in (16,8,4,2,1):
        for j in range(sz): e(f"v_add_f32 v{16+j}, v{16+j}, v{16+j+sz}")
    e("v_mov_b32 v17, v16\ns_nop 1\nv_permlane32_swap_b32 v16, v17\nv_add_f32 v16, v16, v17")
    e("v_cvt_pk_bf16_f32 v18, v16, v16\nv_lshlrev_b32 v17, 16, v18\nv_sub_f32 v17, v16, v17\nv_cvt_pk_bf16_f32 v19, v17, 0")
    e("v_lshrrev_b32 v14, 4, v13\nv_and_b32 v13, 15, v13\nv_lshlrev_b32 v13, 4, v13\nv_lshl_add_u32 v13, v14, 9, v13")
    e(f"s_lshl_b32 s57, s44, 10\ns_lshr_b32 s58, s45, 2\ns_add_u32 s57, s57, s58\ns_xor_b32 s58, s4, 1\ns_lshl_b32 s58, s58, 3\ns_add_u32 s57, s57, s58\ns_add_u32 s57, s57, {WS_CF}\nbuffer_store_dwordx2 v[18:19], v13, s[12:15], s57 offen {SC}\nCS8:\ns_barrier\nCS9:")
def b1(g):
    return [("s_mov_b32 m0, s43\ns_nop 0\n" if i==0 else "")+f"buffer_load_dwordx4 v2, s[12:15], s42 offen offset:{i*1024} {SC} lds"+("\ns_add_u32 s42, s42, 16384\ns_add_u32 s43, s43, 16384" if i==3 else "") for i in range(4)]
NB1=int(os.environ.get('NB1','2'))
NB2=int(os.environ.get('NB2','5'))
def p3_pref(k):
    e=k.e
    if M35: e("s_and_b32 s3, s2, 7\ns_lshl_b32 s3, s3, 2\ns_lshr_b32 s63, s2, 6\ns_add_u32 s3, s3, s63\ns_bfe_u32 s63, s2, 0x30003")
    else: e("s_mov_b32 s3, s5\ns_mov_b32 s63, s6")
    ks_setup(k,8,WS_O,WS_WO,32,0,16,26); ks_pos(k,114688,4)
    e(f"s_and_b32 s40, s5, 1\ns_lshl_b32 s40, s40, 3\ns_add_u32 s40, s40, s6\ns_mul_i32 s41, s40, 229376\ns_add_u32 s41, s41, {WS_WGU}\ns_lshl_b32 s43, s4, 12\ns_add_u32 s42, s41, s43")
    e(f"s_lshl_b32 s28, s22, 15\ns_lshl_b32 s29, s23, 6\ns_add_u32 s28, s28, s29\ns_lshl_b32 s29, s23, 7\ns_add_u32 s30, s29, 4096\ns_add_u32 s31, s29, 8192")
    e(f"v_and_b32 v15, 0x3c, v1\ns_lshl_b32 s57, s4, 9\ns_add_u32 s57, s57, {1536*4}\ns_cmp_lt_u32 s2, 112\ns_cbranch_scc1 PF9\ns_cmp_ge_u32 s2, 224\ns_cbranch_scc1 PF9")
    for i in range(8): e(f"buffer_load_dword a{232+i}, v15, s[12:15], s57 offen offset:{64*i} {SC}\nbuffer_load_dword a{240+i}, v15, s[12:15], s57 offen offset:{2048+64*i} {SC}")
    e("PF9:")
    L=[]
    for s in range(8): L+=ld2(128+8*s,'a',26,s)
    L+=[f"buffer_load_dwordx4 {vr(192+4*q,4,'a')}, v10, s[8:11], s28 offen offset:{32*q}" for q in range(2)]
    for q in range(4): L+=[f"buffer_load_dwordx4 {vr(200+4*q,4,'a')}, v11, s[12:15], s30 offen offset:{32*q} {SC}",f"buffer_load_dwordx4 {vr(216+4*q,4,'a')}, v11, s[12:15], s31 offen offset:{32*q} {SC}"]
    for g in range(NB1): L+=b1(g)
    return L
def p3(k):
    e=k.e
    X=80; GA=88; CB=104
    for g in range(NB1,NB2):
        for x in b1(g): e(x)
    e("v_and_b32 v12, 7, v1\nv_lshlrev_b32 v12, 3, v12\ns_lshl_b32 s28, s3, 6\nv_add_u32 v12, s28, v12\ns_lshl_b32 s35, s3, 3\ns_add_u32 s35, s35, s63")
    st(k,'p3pre')
    poll(k,[(12,WS_FL+F2*2048,0)],one=True)
    st(k,'f2ok')
    touch(k,4,WS_O,'s5',65536,'s_and_b32 s98, s6, 3',16384,4096,32)
    def post(T):
        for r in range(40): e(f"v_accvgpr_read_b32 v{80+r}, a{192+r}")
        e("s_cmp_lt_u32 s2, 112\ns_cbranch_scc1 CV9\ns_cmp_ge_u32 s2, 224\ns_cbranch_scc1 CV9")
        for r in range(16): e(f"v_accvgpr_read_b32 v{128+r}, a{232+r}")
        for i in range(8):
            for j in range(4):
                unpack(k,14,32+4*i+j)
                for d,c in ((176,136),(184,128)):
                    if i==0: e(f"v_pk_mul_f32 {vr(d+2*j,2)}, v[14:15], {vr(c,2)} op_sel_hi:[1,0]")
                    else: e(f"v_pk_fma_f32 {vr(d+2*j,2)}, v[14:15], {vr(c+(i&~1),2)}, {vr(d+2*j,2)} op_sel:[0,{i&1},0] op_sel_hi:[1,{i&1},1]")
        e("CV9:")
    ks_main(k,8,16,0,'a',9,lambda s:128+8*s,post)
    st(k,'p3red')
    e("v_mov_b32 v12, 0\nv_mov_b32 v13, 0")
    for q in range(2): e(f"v_permlane32_swap_b32 v{X+4*q}, v{X+4*q+2}\nv_permlane32_swap_b32 v{X+4*q+1}, v{X+4*q+3}")
    R=BFR
    for j in range(8):
        unpack(k,14,X+j)
        e(f"v_fma_f32 v14, v{R+2*j}, v{GA+2*j}, v14\nv_fma_f32 v15, v{R+2*j+1}, v{GA+2*j+1}, v15\nv_cvt_pk_bf16_f32 v{16+j}, v14, v15")
        unpack(k,14,16+j)
        e(f"v_add_f32 v12, v12, v14\nv_fmac_f32 v13, v14, v14\nv_add_f32 v12, v12, v15\nv_fmac_f32 v13, v15, v15")
        e(f"v_mul_f32 v14, v14, v{CB+2*j}\nv_mul_f32 v15, v15, v{CB+2*j+1}\nv_cvt_pk_bf16_f32 v{24+j}, v14, v15")
    e(f"s_lshl_b32 s28, s22, 15\ns_lshl_b32 s29, s23, 11\ns_add_u32 s28, s28, s29\ns_add_u32 s29, s28, {WS_Y2}")
    e(f"buffer_store_dwordx4 v[24:27], v2, s[12:15], s29 offen {SC}\nbuffer_store_dwordx4 v[28:31], v2, s[12:15], s29 offen offset:1024 {SC}")
    e(f"s_lshl_b32 s28, s22, 12\ns_lshl_b32 s29, s23, 8\ns_add_u32 s28, s28, s29\ns_add_u32 s28, s28, {WS_ST}\nv_and_b32 v3, 31, v1\nv_lshlrev_b32 v3, 3, v3")
    e("v_mov_b32 v14, v12\nv_mov_b32 v15, v13\ns_nop 1\nv_permlane32_swap_b32 v12, v14\nv_permlane32_swap_b32 v13, v15\nv_add_f32 v12, v12, v14\nv_add_f32 v13, v13, v15")
    e(f"buffer_store_dwordx2 v[12:13], v3, s[12:15], s28 offen {SC}")
    for j in range(8): e(f"v_mov_b32 v{112+j}, v{16+j}")
    e(f"v_and_b32 v34, 15, v1\nv_min_u32 v34, 13, v34\nv_lshlrev_b32 v34, 3, v34\nv_add_u32 v34, s63, v34\nv_lshlrev_b32 v34, 3, v34\ns_mov_b32 s98, {WS_FL+FB*2048}\nbuffer_load_dwordx2 v[32:33], v34, s[12:15], s98 offen {SC}")
    ks_setup(k,28,WS_HH,WS_WD,112,0,38,36)
    st(k,'p3end'); publish(k,F3,'s35')
    for x in b1(7): e(x)
    e("v_mov_b32 v120, v32\nv_mov_b32 v121, v33\nv_mov_b32 v122, v34"); cs_finish(k); st(k,'jobB')
    e("v_cmp_ne_u64 vcc, s[96:97], v[120:121]\ns_cmp_eq_u64 vcc, 0\ns_cbranch_scc1 FBOK"); poll(k,[(122,WS_FL+FB*2048,0)],36); e("FBOK:")
    touch(k,8,WS_WD,'s6',229376,'s_and_b32 s98, s5, 7',28672,7168,56)
    for s in range(NWD):
        for x in ld5(128+8*s,'a',36,s): e(x)
def p5(k):
    e=k.e
    X=112; GB=80
    ks_pos(k,0)
    k.srds([('out',24)])
    e("s_lshl_b32 s29, s23, 7\ns_add_u32 s30, s29, 10240")
    for q in range(4): e(f"buffer_load_dwordx4 {vr(GB+4*q,4)}, v11, s[12:15], s30 offen offset:{32*q} {SC}")
    e("v_cmp_ne_u64 vcc, s[96:97], v[14:15]\ns_cmp_eq_u64 vcc, 0\ns_cbranch_scc1 F4AOK"); poll(k,[(12,WS_FL+F4A*2048,0)],96); e("F4AOK:")
    st(k,'p5pre')
    if TM&32:
        e(f"s_and_b32 s34, s6, 3\ns_lshl_b32 s34, s34, 2\ns_add_u32 s34, s34, s4\ns_mul_i32 s34, s34, 14336\ns_mul_i32 s33, s5, 229376\ns_add_u32 s34, s34, s33\ns_add_u32 s34, s34, {WS_HH}\ns_add_u32 s33, s34, 4096")
        e(f"v_lshrrev_b32 v3, 5, v1\nv_mul_u32_u24 v3, 7168, v3\nv_and_b32 v9, 31, v1\nv_min_u32 v13, 23, v9\nv_lshl_add_u32 v13, v13, 7, v3\nv_lshl_add_u32 v3, v9, 7, v3\nbuffer_load_dword v100, v3, s[12:15], s34 offen {SC}")
    ks_main(k,28,38,120,'v',17,lambda s: 128+8*s if s<16 else 8*(s-16))
    st(k,'p5red')
    R=BFR
    for j in range(8):
        unpack(k,14,X+j)
        e(f"v_fma_f32 v14, v{R+2*j}, v{GB+2*j}, v14\nv_fma_f32 v15, v{R+2*j+1}, v{GB+2*j+1}, v15\nv_cvt_pk_bf16_f32 v{16+j}, v14, v15")
    e("s_lshl_b32 s28, s22, 15\ns_lshl_b32 s29, s23, 6\ns_add_u32 s28, s28, s29")
    e("v_permlane32_swap_b32 v16, v18\nv_permlane32_swap_b32 v17, v19\nv_permlane32_swap_b32 v20, v22\nv_permlane32_swap_b32 v21, v23")
    e("buffer_store_dwordx4 v[16:19], v10, s[24:27], s28 offen\nbuffer_store_dwordx4 v[20:23], v10, s[24:27], s28 offen offset:32")
    e(f"s_or_b32 s28, s2, s4\ns_cmp_lg_u32 s28, 0\ns_cbranch_scc1 P5E\nv_mov_b32 v12, s96\nv_mov_b32 v13, s97\nv_mov_b32 v14, 0\ns_mov_b32 s28, {WS_NONCE}\nbuffer_store_dwordx2 v[12:13], v14, s[12:15], s28 offen\nP5E:")
```

```python
from common import *
import re
WS_FL=0x90000; WS_NONCE=WS_FL+0x8000; WS_MP=0xA0000
FM,F1,FA,F2,FB,F3,F4,F4A,FC=range(9)
SC="sc1"
QSCALE=0.25*1.4426950408889634
LNW=int(os.environ.get('LNW','0'))
CT=int(os.environ.get('CT','2'))
JAS=int(os.environ.get('JAS','0')); JAF=int(os.environ.get('JAF','23'))
PFS=int(os.environ.get('PFS','4'))
TL=int(os.environ.get('TL','0'))
uid=[0]; PFR=int(os.environ.get('PFR','4'))
MAP=int(os.environ.get('MAP','0')); PFM=int(os.environ.get('PFM','5'))
def publish(k,ph,idx='s7',drain=True):
    e=k.e; uid[0]+=1
    e("s_waitcnt vmcnt(0)"); st(k,f"dr{ph}"); e("s_barrier"); flag(k,ph,idx)
def flag(k,ph,idx):
    e=k.e; uid[0]+=1
    e(f"s_cmp_lg_u32 s4, 0\ns_cbranch_scc1 PB{uid[0]}")
    e(f"s_lshl_b32 s98, {idx}, 3\ns_add_u32 s98, s98, {WS_FL+ph*2048}\nv_mov_b32 v252, s96\nv_mov_b32 v253, s97\nv_mov_b32 v254, 0\ns_mov_b64 exec, 1\nbuffer_store_dwordx2 v[252:253], v254, s[12:15], s98 offen {SC}\ns_mov_b64 exec, -1\nPB{uid[0]}:")
SL=int(os.environ.get('SL','4')); SLG=int(os.environ.get('SLG','8'))
def poll(k,items,r0=240,gran=False,one=False):
    e=k.e; uid[0]+=1; u=uid[0]
    if one: e(f"s_cmp_lg_u32 s4, 0\ns_cbranch_scc1 PD{u}")
    e(f"s_mov_b32 s99, 0\nPL{u}:")
    r=r0; regs=[]
    for va,so,wide in items:
        n=4 if wide else 2
        e(f"s_mov_b32 s98, {so}\nbuffer_load_dwordx{n} {vr(r,n)}, v{va}, s[12:15], s98 offen {SC}")
        regs+=[r+2] if gran else [r+2*i for i in range(n//2)]; r+=4
    e("s_add_u32 s99, s99, 1\ns_waitcnt vmcnt(0)")
    for i,q in enumerate(regs):
        e(f"v_cmp_ne_u64 {'vcc' if i==0 else 's[100:101]'}, s[96:97], {vr(q,2)}")
        if i: e("s_or_b64 vcc, vcc, s[100:101]")
    e(f"s_cmp_eq_u64 vcc, 0\ns_cbranch_scc1 PD{u}\ns_sleep {SLG if gran else SL}\ns_cmp_lt_u32 s99, 50000\ns_cbranch_scc1 PL{u}\nPD{u}:")
    if one: e("s_waitcnt vmcnt(0)\ns_barrier")
TM=int(os.environ.get('TM','0'))
def touch(k,bit,base,idx,istr,u,ustr,wstr,nl,extra=(0,),vt=3,vd=255):
    if not TM&bit: return
    k.e(f"{u}\ns_mul_i32 s98, s98, {ustr}\ns_mul_i32 s99, {idx}, {istr}\ns_add_u32 s98, s98, s99\ns_mul_i32 s99, s4, {wstr}\ns_add_u32 s98, s98, s99\nv_min_u32 v{vt}, {nl-1}, v1\nv_lshlrev_b32 v{vt}, 7, v{vt}")
    for x in extra: k.e(f"s_add_u32 s99, s98, {base+x}\nbuffer_load_dword v{vd}, v{vt}, s[12:15], s99 offen {SC}")
def allflags(ph): return [(2,WS_FL+ph*2048,1),(2,WS_FL+ph*2048+1024,1)]
JB=139264
WR=65536
def p1(k,jobA_issue):
    e=k.e; T=Trk(k)
    e("s_cmp_ge_u32 s2, 16\ns_cbranch_scc1 PK_FIRST\ns_getpc_b64 s[38:39]\ns_lshr_b32 s30, s2, 3\ns_lshl_b32 s30, s30, 15\nv_lshlrev_b32 v10, 7, v0\nv_add_u32 v10, s30, v10\nv_min_u32 v10, PK_LAST-PK_FIRST, v10\nv_mov_b32 v11, s39\nv_add_co_u32 v10, vcc, s38, v10\nv_addc_co_u32 v11, vcc, 0, v11, vcc\nglobal_load_dword v63, v[10:11], off\nPK_FIRST:")
    k.srds([('ws',12),('x',8),('c',16),('wm',20),('wqkv',24)])
    lane_setup(k,1,4)
    if MAP==0:
        e("s_and_b32 s5, s2, 6\ns_lshl_b32 s5, s5, 2\ns_lshr_b32 s6, s2, 5\ns_add_u32 s5, s5, s6")
        e("s_and_b32 s6, s2, 1\ns_lshl_b32 s6, s6, 2\ns_bfe_u32 s7, s2, 0x20003\ns_add_u32 s6, s6, s7")
    else:
        e("s_and_b32 s5, s2, 7\ns_lshl_b32 s5, s5, 2\ns_lshr_b32 s6, s2, 6\ns_add_u32 s5, s5, s6\ns_bfe_u32 s6, s2, 0x30003")
    e("s_lshl_b32 s7, s5, 3\ns_add_u32 s7, s7, s6")
    e("v_lshlrev_b32 v2, 4, v1\nv_lshrrev_b32 v3, 3, v1\nv_and_b32 v4, 7, v1\nv_lshlrev_b32 v4, 4, v4")
    e("s_movk_i32 s28, 6144\nv_mul_lo_u32 v5, v3, s28\nv_add_u32 v5, v5, v4\nv_lshlrev_b32 v6, 1, v3")
    e("s_and_b32 s29, s2, 3\ns_lshl_b32 s29, s29, 2\ns_add_u32 s29, s29, s4\ns_lshl_b32 s30, s29, 6\ns_mul_i32 s29, s29, 196608\ns_lshr_b32 s31, s2, 2\ns_lshl_b32 s31, s31, 7\ns_add_u32 s29, s29, s31")
    e("s_cmp_lt_u32 s2, 192\ns_cselect_b32 s29, s29, 0x7f000000")
    e("s_lshl_b32 s32, s5, 16\ns_lshl_b32 s33, s4, 14\ns_add_u32 s32, s32, s33")
    e("v_and_b32 v7, 16, v1\nv_lshlrev_b32 v7, 2, v7\nv_xor_b32 v7, v7, v4\nv_mul_u32_u24 v8, 3072, v3\nv_add_u32 v7, v7, v8")
    e(f"s_mul_i32 s34, s4, {8*3072}\ns_lshl_b32 s35, s6, 7\ns_add_u32 s34, s34, s35\ns_lshr_b32 s35, s4, 1\ns_mul_i32 s35, s35, 6144\ns_and_b32 s36, s4, 1\ns_lshl_b32 s36, s36, 10\ns_add_u32 s35, s35, s36\ns_add_u32 s35, s35, {WR}")
    e(f"s_waitcnt lgkmcnt(0)\ns_load_dwordx2 s[96:97], s[12:13], {WS_NONCE}")
    for i in range(4): T.op('vm',f"buffer_load_ushort v{12+i}, v6, s[16:19], s30 offen offset:{16*i}",'m')
    for i in range(4): T.op('vm',f"buffer_load_dwordx4 {vr(16+4*i,4)}, v5, s[20:23], s29 offen\ns_add_u32 s29, s29, 49152",'m')
    X=192; st(k,"karg")
    for i in range(16): e(f"buffer_load_dwordx4 {vr(X+4*i,4)}, v2, s[8:11], s32 offen offset:{(i&3)*1024}"+("\ns_add_u32 s32, s32, 4096" if i&3==3 else ""))
    def wst(g):
        return [(f"s_add_u32 m0, s35, {(g%6)*12288+p*2048}\ns_add_u32 s37, s34, {p*1024}\nbuffer_load_dwordx4 v7, s[24:27], s37 offen lds"+(f"\ns_add_u32 s34, s34, {32*3072}" if p==2 else ""),('w',g)) for p in range(3)]
    WQ_=[]
    for g in range(16): WQ_+=wst(g)
    def issue(n):
        for _ in range(n):
            if WQ_:
                x,g=WQ_.pop(0); T.op('vm',x,g)
    nt=1
    pfi="buffer_load_dword v62, v9, s[40:43], s44 offen"
    if PFM==1: e(pfi)
    elif PFM>=2: e(f"v_mul_u32_u24 v10, 3072, v1\ns_and_b32 s45, s5, 7\ns_mul_i32 s45, s45, {64*3072}\ns_lshl_b32 s33, s6, 7\ns_add_u32 s45, s45, s33\ns_min_u32 s33, s4, 2\ns_lshl_b32 s33, s33, 10\ns_add_u32 s45, s45, s33\nbuffer_load_dword v62, v10, s[24:27], s45 offen")
    else: nt=0
    if PFM==4: e(pfi); nt+=1
    if TL:
        e(f"s_lshr_b32 s30, s2, 3\ns_cmp_lg_u32 s30, 30\ns_cbranch_scc1 TL9")
        k.srds([('wg',40),('wu',44),('wd',48),('wo',52),('out',56)])
        e(f"v_lshlrev_b32 v10, 19, v1\ns_lshl_b32 s30, s4, 17\nbuffer_load_dword v61, v10, s[12:15], s30 offen\nv_lshlrev_b32 v10, 15, v1\ns_lshl_b32 s30, s4, 13\ns_waitcnt lgkmcnt(0)")
        for r in (40,44,48,52,56): e(f"buffer_load_dword v61, v10, {sr(r,4)}, s30 offen")
        e("TL9:")
    if JAS==-2: jobA_issue(T); nt+=4
    e(f"s_waitcnt vmcnt({20+nt})")
    for i in range(8): e(f"v_mov_b32 v{32+i}, 0")
    for i in range(4):
        r=12+i
        e(f"v_lshlrev_b32 v{r}, 16, v{r}\nv_mul_f32 v10, {f2u(-1.4426950408889634)}, v{r}\nv_exp_f32 v10, v10\ns_nop 0\nv_add_f32 v10, 1.0, v10\nv_rcp_f32 v10, v10\ns_nop 0\nv_mul_f32 v{r}, v{r}, v10\nv_cvt_pk_bf16_f32 v{r}, v{r}, v{r}\nv_lshlrev_b32 v{r}, 16, v{r}")
    for i in range(4):
        r=12+i
        e(f"s_waitcnt vmcnt({19-i+nt})")
        for j in range(4):
            unpack(k,10,16+4*i+j)
            e(f"v_fmac_f32 v{32+2*j}, v10, v{r}\nv_fmac_f32 v{33+2*j}, v11, v{r}")
    e("s_lshl_b32 s30, s4, 11\nv_lshlrev_b32 v10, 8, v3\nv_lshl_add_u32 v10, v4, 1, v10\nv_add_u32 v10, s30, v10\nds_write_b128 v10, v[32:35]\nds_write_b128 v10, v[36:39] offset:16")
    e("s_waitcnt lgkmcnt(0)\ns_add_u32 s96, s96, 1\ns_addc_u32 s97, s97, 0\ns_barrier\ns_cmp_lg_u32 s4, 0\ns_cbranch_scc1 P0_A\ns_cmp_ge_u32 s2, 192\ns_cbranch_scc1 P0_A")
    e("v_and_b32 v10, 31, v1\nv_lshrrev_b32 v11, 5, v1\nv_lshlrev_b32 v11, 12, v11\nv_lshl_add_u32 v11, v10, 3, v11\nv_lshlrev_b32 v10, 4, v10")
    for j in range(16): e(f"ds_read_b64 {vr(16+2*j,2)}, v11 offset:{j*256}")
    e(f"s_and_b32 s29, s2, 3\ns_mul_i32 s29, s29, 24576\ns_lshl_b32 s30, s31, 2\ns_add_u32 s29, s29, s30\ns_add_u32 s29, s29, {WS_MP}\ns_waitcnt lgkmcnt(0)")
    for sz in (16,8,4,2):
        for j in range(sz): e(f"v_add_f32 v{16+j}, v{16+j}, v{16+j+sz}")
    e(f"v_mov_b32 v18, v16\nv_mov_b32 v19, v17\ns_nop 1\nv_permlane32_swap_b32 v16, v18\nv_permlane32_swap_b32 v17, v19\nv_add_f32 v56, v16, v18\nv_add_f32 v57, v17, v19\nv_mov_b32 v58, s96\nv_mov_b32 v59, s97\nbuffer_store_dwordx4 v[56:59], v10, s[12:15], s29 offen {SC}\nP0_A:")
    st(k,'modpub')
    if LNW==2: issue(18); nt+=18
    if PFM==2: e(pfi); nt+=1
    for i in range(16):
        e(f"s_waitcnt vmcnt({nt+15-i+(i if LNW==1 else 0)})")
        if i in (0,8): st(k,f"x{i}")
        for j in range(4):
            d=64+8*i+2*j
            unpack(k,d,X+4*i+j)
            if j==0: e(f"v_pk_mul_f32 v[50:51], {vr(d,2)}, {vr(d,2)}")
            else: e(f"v_pk_add_f32 v[48:49], {vr(d-2,2) if j==1 else 'v[48:49]'}, {vr(d,2)}\nv_pk_fma_f32 v[50:51], {vr(d,2)}, {vr(d,2)}, v[50:51]")
        e(f"v_add_f32 v{16+i}, v48, v49\nv_add_f32 v{32+i}, v50, v51")
        if LNW==1: issue(1)
    if LNW==1: issue(2)
    st(k,"lnsum")
    e("s_nop 1")
    for b in (16,32):
        for i in range(8): e(f"v_permlane32_swap_b32 v{b+i}, v{b+i+8}")
        for i in range(8): e(f"v_add_f32 v{b+i}, v{b+i}, v{b+i+8}")
    for b in (16,32):
        for i in range(4): e(f"v_permlane16_swap_b32 v{b+i}, v{b+i+4}")
    for b in (16,32):
        for i in range(4): e(f"v_add_f32 v{b+i}, v{b+i}, v{b+i+4}")
    for rot in (8,4,2,1):
        for b in (16,32):
            for i in range(4): e(f"v_add_f32_dpp v{b+i}, v{b+i}, v{b+i} row_ror:{rot} row_mask:0xf bank_mask:0xf")
    for i in range(4):
        e(f"v_mul_f32 v{16+i}, {f2u(1/512)}, v{16+i}\nv_mul_f32 v{32+i}, {f2u(1/512)}, v{32+i}\nv_fma_f32 v{32+i}, -v{16+i}, v{16+i}, v{32+i}\nv_max_f32 v{32+i}, 0, v{32+i}\nv_add_f32 v{32+i}, {f2u(1e-5)}, v{32+i}\nv_rsq_f32 v{32+i}, v{32+i}\ns_nop 0\nv_mul_f32 v{16+i}, v{16+i}, v{32+i}")
    e("s_nop 1")
    for i in range(16):
        q=((i>>2)&1)+2*(i>>3)
        e(f"v_readlane_b32 s{41+(i&1)*2}, v{16+(i&3)}, {16*q}\nv_readlane_b32 s{40+(i&1)*2}, v{32+(i&3)}, {16*q}\ns_nop 0\nv_mov_b32 v48, s{41+(i&1)*2}")
        for j in range(4): e(f"v_pk_fma_f32 {vr(64+8*i+2*j,2)}, {vr(64+8*i+2*j,2)}, {sr(40+(i&1)*2,2)}, v[48:49] op_sel_hi:[1,0,0] neg_lo:[0,0,1] neg_hi:[0,0,1]")
    e("v_and_b32 v10, 7, v1\ns_and_b32 s30, s4, 1\ns_lshl_b32 s30, s30, 8\ns_lshr_b32 s31, s4, 1\ns_lshl_b32 s31, s31, 15\ns_add_u32 s30, s30, s31\nv_lshlrev_b32 v10, 4, v10\nv_lshl_add_u32 v10, v1, 9, v10\nv_add_u32 v10, s30, v10")
    e("v_lshrrev_b32 v11, 5, v1\nv_and_b32 v12, 31, v1\nv_xor_b32 v12, v12, v11\nv_lshlrev_b32 v12, 4, v12\nv_lshl_add_u32 v12, v11, 9, v12\nv_add_u32 v12, s31, v12")
    for i in range(1,4): e(f"v_xor_b32 v{12+i}, {32*i}, v12")
    e("v_bfe_u32 v8, v1, 2, 2\nv_lshl_add_u32 v8, v11, 3, v8\nv_lshlrev_b32 v8, 7, v8\nv_and_b32 v9, 3, v1\nv_lshl_add_u32 v8, v9, 3, v8\nv_bfe_u32 v9, v1, 4, 1\nv_lshl_add_u32 v8, v9, 5, v8")
    e(f"v_bfe_u32 v9, v1, 3, 1\ns_and_b32 s30, s4, 1\nv_xor_b32 v9, s30, v9\nv_lshl_add_u32 v8, v9, 6, v8\nv_add_u32 v8, {WR}, v8\nv_add_u32 v9, 36864, v8\ns_lshl_b32 s30, s4, 10\nv_add_u32 v6, s30, v2\nv_lshlrev_b32 v5, 5, v1\nv_add_u32 v5, 155648, v5")
    st(k,'lndone')
    if LNW==0: issue(18)
    if PFM==3: e(pfi.replace('v9,','v61,').replace('s[40:43]','s[52:55]'))
    if JAS==-1: jobA_issue(T)
    st(k,'wiss')
    modfin(k)
    poll(k,[(6,WS_MP+q*24576+a*4096,1) for a in range(2) for q in range(4)],192,True); T.done['vm']=len(T.q['vm'])
    st(k,'modok')
    for a in range(2):
        for x in range(2):
            r=192+16*a+x
            e(f"v_add_f32 v{r}, v{r}, v{r+4}\nv_add_f32 v{r+8}, v{r+8}, v{r+12}\nv_add_f32 v{16+2*a+x}, v{r}, v{r+8}")
        e(f"v_cvt_pk_bf16_f32 v11, v{16+2*a}, v{17+2*a}"); unpack(k,16+2*a,11)
    e("v_add_f32 v18, 1.0, v18\nv_add_f32 v19, 1.0, v19\nv_cvt_pk_bf16_f32 v11, v18, v19"); unpack(k,18,11)
    e("v_lshrrev_b32 v6, 1, v6\nv_add_u32 v6, 155648, v6\nds_write_b64 v6, v[16:17]\nds_write_b64 v6, v[18:19] offset:2048\ns_waitcnt lgkmcnt(0)\ns_barrier")
    for a in range(2):
        for hf in range(2): e(f"ds_read_b128 {vr(16+8*a+4*hf,4)}, v5 offset:{a*2048+hf*16}")
    e("s_waitcnt lgkmcnt(0)")
    for i in range(16):
        for j in range(4): e(f"v_pk_fma_f32 {vr(64+8*i+2*j,2)}, {vr(64+8*i+2*j,2)}, {vr(24+2*j,2)}, {vr(16+2*j,2)}")
        for j in range(4): e(f"v_cvt_pk_bf16_f32 v{64+8*i+j}, v{64+8*i+2*j}, v{64+8*i+2*j+1}")
        e(f"v_xor_b32 v11, {(i&7)*16}, v10\nds_write_b128 v11, {vr(64+8*i,4)} offset:{(i>>3)*128}")
    e("s_waitcnt lgkmcnt(0)\ns_barrier")
    st(k,'hready')
    ACC=64; FR=16
    def rd(s):
        f=FR+16*(s%3); o=(s%12)*6144; va=8 if o<36864 else 9; o%=36864
        L=[f"ds_read_b128 {vr(f,4)}, v{12+(s&3)} offset:{s*1024}"]
        for p in range(3): L+=[f"ds_read_b64_tr_b16 {vr(f+4+4*p+2*x,2)}, v{va} offset:{o+p*2048+x*512}" for x in range(2)]
        return L
    for s in range(2):
        for x in rd(s): T.op('lg',x,('b',s))
    for s in range(32):
        if s+2<32 and s%2==0 and s>0:
            g=(s+2)//2
            if g>=6: T.wait('vm',('w',g))
            e("s_barrier")
        if s==JAF:
            T.wait('vm','j'); job_finish(k,'A',112); T.log('vm','js',4); T.done['lg']=len(T.q['lg'])
        L=rd(s+2) if s+2<32 else []
        T.wait('lg',('b',s))
        f=FR+16*(s%3)
        for p in range(3):
            b=vr(f+4+4*p,4); h=vr(f,4); d=vr(ACC+16*p,16); c='0' if s==0 else d
            e(f"v_mfma_f32_32x32x16_bf16 {d}, {b}, {h}, {c}" if p<2 else f"v_mfma_f32_32x32x16_bf16 {d}, {h}, {b}, {c}")
            for _ in range(3 if p==0 else 2):
                if L: T.op('lg',L.pop(0),('b',s+2))
            if s>=2 and s%2==0: issue(1)
            if s==JAS and p==2: jobA_issue(T); T.done['lg']=len(T.q['lg'])
    st(k,"gemm1")
    e("s_lshl_b32 s16, s5, 1\ns_lshr_b32 s17, s4, 1\ns_add_u32 s16, s16, s17\ns_lshl_b32 s17, s6, 1\ns_and_b32 s18, s4, 1\ns_add_u32 s17, s17, s18")
    e(f"s_lshl_b32 s17, s17, 17\ns_lshl_b32 s18, s16, 10\ns_add_u32 s17, s17, s18\ns_add_u32 s19, s17, s18\ns_add_u32 s19, s19, {WS_V}\ns_mov_b32 s22, {f2u(QSCALE)}\ns_nop 1")
    e("s_and_b32 s30, s4, 1\ns_lshl_b32 s30, s30, 12\ns_lshr_b32 s31, s4, 1\ns_lshl_b32 s31, s31, 10\ns_add_u32 s30, s30, s31\ns_add_u32 s30, s30, 155648\nv_add_u32 v40, s30, v2")
    for p in (1,2,0):
        if p==0:
            for r in range(16): e(f"v_mul_f32 v{ACC+r}, s22, v{ACC+r}")
        for hh in range(2):
            d=16+(2*p+hh)*4
            for j in range(4): e(f"v_cvt_pk_bf16_f32 v{d+j}, v{ACC+16*p+8*hh+2*j}, v{ACC+16*p+8*hh+2*j+1}")
            if p==0: e(f"ds_write_b128 v40, {vr(d,4)} offset:{hh*2048}")
            elif p<2: e(f"s_add_u32 s20, s17, {(WS_Q,WS_K)[p]+hh*65536}\nbuffer_store_dwordx4 {vr(d,4)}, v2, s[12:15], s20 offen {SC}")
            else: e(f"buffer_store_dwordx4 {vr(d,4)}, v2, s[12:15], s19 offen offset:{hh*1024} {SC}")
    st(k,'p1end')
    p2_setup(k)
    e('s_waitcnt lgkmcnt(0)')
    publish(k,F1); flag(k,FA,'s2')

def job_issue(k,rnd,jb):
    e=lambda x: k.e(x.replace('v60','v172').replace('v61','v173').replace('v62','v174') if rnd=='A' and JAS>=0 else x.replace('v62','v59'))
    e(f"v_lshrrev_b32 v60, 3, v1\nv_and_b32 v61, 7, v1\nv_lshlrev_b32 v61, 4, v61\nv_and_b32 v62, 16, v1\nv_lshlrev_b32 v62, 2, v62\nv_xor_b32 v61, v61, v62\ns_lshl_b32 s56, s4, 12\ns_add_u32 s56, s56, {jb}")
    if rnd=='A':
        e("s_cmp_ge_u32 s2, 224\ns_cbranch_scc1 JI_A1")
        k.srds([('wg',48),('wu',52)])
        e("s_lshr_b32 s57, s2, 3\ns_and_b32 s58, s2, 7\ns_lshl_b32 s58, s58, 2\ns_add_u32 s58, s58, s4")
        e(f"v_mul_u32_u24 v60, 3584, v60\nv_xor_b32 v62, 32, v61\nv_add_u32 v62, v60, v62\nv_add_u32 v60, v60, v61\ns_mul_i32 s59, s58, {16*3584}\ns_lshl_b32 s60, s57, 7\ns_add_u32 s59, s59, s60\ns_add_u32 s60, s59, {8*3584}\ns_waitcnt lgkmcnt(0)")
        for m in range(2):
            for hf in range(2): e(f"s_add_u32 m0, s56, {m*2048+hf*1024}\ns_nop 0\nbuffer_load_dwordx4 v{60+2*m}, {sr(48+4*m,4)}, s{59+hf} offen lds")
        for b in range(4):
            e(f"s_lshl_b32 s59, s57, 2\ns_add_u32 s59, s59, {b}\ns_mul_i32 s60, s59, 9363\ns_lshr_b32 s60, s60, 16\ns_mul_i32 s61, s60, 7\ns_sub_u32 s59, s59, s61")
            e(f"s_lshl_b32 s61, s58, 2\ns_mul_i32 s62, s58, 3\ns_add_u32 s62, s62, 124\ns_cmp_lt_u32 s59, 4\ns_cselect_b32 s61, s61, s62\ns_add_u32 s61, s61, s59\ns_mul_i32 s60, s60, 224\ns_add_u32 s61, s61, s60\ns_lshl_b32 s61, s61, 10\ns_add_u32 s{44+b}, s61, {WS_WGU}")
        e("s_branch JI_A2\nJI_A1:")
    else: e("s_cmp_ge_u32 s2, 112\ns_cbranch_scc1 JI_B2")
    nm,base,blk,sub=(('wo',WS_WO,32768,224) if rnd=='A' else ('wd',WS_WD,114688,0))
    k.srds([(nm,48)])
    e(f"s_sub_u32 s57, s2, {sub}\ns_and_b32 s58, s57, 7\ns_lshr_b32 s57, s57, 3\ns_lshl_b32 s57, s57, 3\ns_lshl_b32 s59, s4, 1\ns_add_u32 s57, s57, s59")
    e(f"s_mul_i32 s44, s58, {2*blk}\ns_lshl_b32 s59, s57, 10\ns_add_u32 s44, s44, s59\ns_add_u32 s44, s44, {base}\ns_add_u32 s45, s44, {blk}\ns_add_u32 s46, s44, 1024\ns_add_u32 s47, s45, 1024")
    e("s_lshl_b32 s59, s57, 14\ns_lshl_b32 s60, s58, 7\ns_add_u32 s59, s59, s60\nv_lshl_add_u32 v60, v60, 10, v61\ns_waitcnt lgkmcnt(0)")
    for i in range(4): e(f"s_add_u32 m0, s56, {i*1024}\ns_nop 0\nbuffer_load_dwordx4 v60, s[48:51], s59 offen lds\ns_add_u32 s59, s59, 8192")
    e(f"JI_{rnd}2:")
def job_finish(k,rnd,sh=0):
    e=lambda x: k.e(re.sub(r'\bv\[?(\d+)(:(\d+)\])?',lambda m: m.group(0) if int(m.group(1))<16 else (f'v[{int(m.group(1))+sh}:{int(m.group(3))+sh}]' if m.group(2) else f'v{int(m.group(1))+sh}'),x))
    if rnd=='B': e("s_cmp_ge_u32 s2, 112\ns_cbranch_scc1 JF_B9")
    e("v_lshrrev_b32 v36, 5, v1\nv_bfe_u32 v37, v1, 2, 2\nv_bfe_u32 v38, v1, 4, 1\nv_and_b32 v39, 3, v1\nv_bfe_u32 v40, v1, 3, 1")
    e("v_lshlrev_b32 v32, 7, v37\nv_lshl_add_u32 v32, v39, 3, v32\nv_lshl_add_u32 v32, v38, 5, v32\nv_lshl_add_u32 v32, v40, 6, v32\nv_lshl_add_u32 v32, v36, 9, v32\nv_add_u32 v32, s56, v32")
    e("v_xor_b32 v33, 64, v32\nv_add_u32 v34, 2048, v32\nv_add_u32 v35, 2048, v33")
    if rnd=='A':
        e("s_cmp_ge_u32 s2, 224\ns_cbranch_scc1 JF_A1\nv_lshl_add_u32 v32, v38, 11, v32\nv_xor_b32 v33, 32, v32\nv_xor_b32 v34, 64, v32\nv_xor_b32 v35, 96, v32\nJF_A1:")
    for b in range(4): e(f"ds_read_b64_tr_b16 {vr(16+4*b,2)}, v{32+b}\nds_read_b64_tr_b16 {vr(18+4*b,2)}, v{32+b} offset:1024")
    e("s_waitcnt lgkmcnt(0)")
    for b in range(4): e(f"buffer_store_dwordx4 {vr(16+4*b,4)}, v2, s[12:15], s{44+b} offen {SC}")
    if rnd=='B': e("JF_B9:")
def modfin(k):
    e=k.e
    e("s_cmp_lt_u32 s2, 224\ns_cbranch_scc1 MF9\ns_cmp_lg_u32 s4, 0\ns_cbranch_scc1 MF9")
    e("s_sub_u32 s30, s2, 208\nv_and_b32 v36, 31, v1\nv_lshlrev_b32 v36, 4, v36\ns_lshl_b32 s31, s30, 9\nv_add_u32 v36, s31, v36")
    poll(k,[(36,WS_MP+q*24576,1) for q in range(4)],40,True)
    e("s_lshr_b32 s30, s30, 3\ns_cmp_eq_u32 s30, 4\ns_cselect_b32 s30, 1.0, 0\nv_lshrrev_b32 v36, 1, v36")
    for x in range(2): e(f"v_add_f32 v{40+x}, v{40+x}, v{44+x}\nv_add_f32 v{48+x}, v{48+x}, v{52+x}\nv_add_f32 v{38+x}, v{40+x}, v{48+x}")
    e("v_cvt_pk_bf16_f32 v37, v38, v39"); unpack(k,38,37)
    e("v_add_f32 v38, s30, v38\nv_add_f32 v39, s30, v39\nv_cvt_pk_bf16_f32 v37, v38, v39"); unpack(k,38,37)
    e(f"buffer_store_dwordx2 v[38:39], v36, s[12:15], 0 offen {SC}\nMF9:")
def p2_setup(k):
    e=k.e; MK=240
    e("v_mov_b32 v8, 0x3f803f80")
    for r in range(48,128): e(f"v_accvgpr_write_b32 a{r}, v8")
    e("v_and_b32 v8, 31, v1\nv_lshrrev_b32 v9, 5, v1\nv_lshlrev_b32 v9, 2, v9\nv_sub_u32 v14, v8, v9\nv_mov_b32 v8, 0xffff\nv_mov_b32 v9, 0xffff0000")
    for r in range(8):
        c=lambda x: 8*(x>>2)+(x&3)
        e(f"v_cmp_le_i32 vcc, {c(2*r)}, v14\nv_cmp_le_i32 s[30:31], {c(2*r+1)}, v14\ns_nop 0\nv_cndmask_b32 v10, 0, v8, vcc\nv_cndmask_b32 v11, 0, v9, s[30:31]\nv_or_b32 v{MK+r}, v10, v11")
    e("s_lshl_b32 s19, s5, 1\ns_lshl_b32 s20, s6, 2\ns_add_u32 s20, s20, s4")
    e(f"s_lshl_b32 s21, s20, 16\ns_lshl_b32 s22, s19, 10\ns_add_u32 s22, s22, s21\ns_add_u32 s22, s22, {WS_Q}\ns_add_u32 s21, s21, {WS_K}")
    e(f"s_lshr_b32 s23, s20, 1\ns_lshl_b32 s23, s23, 17\ns_and_b32 s24, s4, 1\ns_lshl_b32 s24, s24, 8\ns_add_u32 s23, s23, s24\ns_add_u32 s23, s23, {WS_V}")
    e("v_min_u32 v8, 4, v1\nv_sub_u32 v8, s5, v8\nv_max_i32 v8, 0, v8\nv_lshlrev_b32 v8, 6, v8\ns_lshl_b32 s30, s6, 3\nv_add_u32 v8, s30, v8")
def p2(k,after_loads,mid):
    e=k.e; T=Trk(k)
    S=64; O=208; NM=224; MK=240; PF=[]; npf=[0]
    st(k,'p2pre')
    e("s_lshl_b32 s30, s4, 11\ns_add_u32 s30, s30, 155648\nv_add_u32 v9, s30, v2\nds_read_b128 a[0:3], v9\nds_read_b128 a[4:7], v9 offset:1024")
    poll(k,[(8,WS_FL+F1*2048,0)],248,one=True); e("s_waitcnt lgkmcnt(0)")
    st(k,'f1ok')
    for i in range(5):
        e(f"s_add_i32 s28, s19, {2*i-8}\ns_max_i32 s28, s28, 0\ns_lshl_b32 s29, s28, 10\ns_add_u32 s30, s29, s21")
        for x in range(2): T.op('vm',f"buffer_load_dwordx4 {vr(8+8*i+4*x,4,'a')}, v2, s[12:15], s30 offen offset:{x*1024} {SC}",'k')
    VL=[]
    for i in range(5):
        for x in range(4): VL.append((f"s_add_i32 s28, s19, {2*i-8}\ns_max_i32 s28, s28, 0\ns_lshl_b32 s29, s28, 11\ns_add_u32 s30, s29, s23\n" if x==0 else "")+f"s_mov_b64 exec, s[26:27]\nbuffer_load_dwordx4 {vr(48+16*i+4*x,4,'a')}, v2, s[12:15], s30 offen offset:{x*1024} {SC}\ns_mov_b64 exec, -1")
    e("s_mov_b32 s26, 0xffff\ns_mov_b32 s27, 0xffff")
    for _ in range(8): T.op('vm',VL.pop(0),'v')
    e("s_and_b32 s40, s5, 1\ns_lshl_b32 s40, s40, 3\ns_add_u32 s40, s40, s6\ns_mul_i32 s31, s40, 7\ns_lshr_b32 s31, s31, 2\ns_lshl_b32 s31, s31, 3\ns_sub_u32 s31, s31, 32\nv_min_u32 v15, 55, v1\nv_add_u32 v15, s31, v15\nv_add_u32 v13, 224, v1\nv_cmp_gt_u32 vcc, 32, v1\ns_nop 1\nv_cndmask_b32 v15, v15, v13, vcc\nv_lshlrev_b32 v15, 3, v15")
    e(f"s_lshl_b32 s25, s19, 15\ns_lshl_b32 s21, s20, 10\ns_add_u32 s25, s25, s21\ns_add_u32 s25, s25, {WS_O}")
    st(k,'p2iss'); T.wait('vm','k'); st(k,'p2k')
    for it in range(2):
        Q=vr(4*it,4,'a'); Kf=lambda t: vr(8+4*(t+it),4,'a'); Vf=lambda f: vr(48+8*it+4*f,4,'a')
        e(f"v_mfma_f32_32x32x16_bf16 {vr(S+128,16)}, {Kf(8)}, {Q}, 0")
        for t in range(8):
            e(f"s_cmp_lt_u32 s19, {8-t-it}\ns_cbranch_scc1 P2F{it}{t}\nv_mfma_f32_32x32x16_bf16 {vr(S+16*t,16)}, {Kf(t)}, {Q}, 0\nP2N{it}{t}:")
        for r in range(16): e(f"v_cmp_le_i32 vcc, {8*(r>>2)+(r&3)}, v14\ns_nop 1\nv_cndmask_b32 v{S+r}, v{S+r}, v{S+128+r}, vcc" if False else f"v_cmp_le_i32 {sr(32+2*(r&3),2)}, {8*(r>>2)+(r&3)}, v14"+("".join(f"\nv_cndmask_b32 v{S+r-3+x}, v{S+r-3+x}, v{S+125+r+x}, {sr(32+2*x,2)}" for x in range(4)) if r&3==3 else ""))
        e(f"v_max3_f32 v8, v{S}, v{S+1}, v{S+2}\nv_max3_f32 v9, v{S+3}, v{S+4}, v{S+5}")
        for r in range(6,126,4):
            e(f"v_max3_f32 v8, v8, v{S+r}, v{S+r+1}\nv_max3_f32 v9, v9, v{S+r+2}, v{S+r+3}")
            if VL and r%8==6: e(VL.pop(0))
            elif it==1 and PF and r%16==6: e(PF.pop(0))
        if it==0: e(f"s_mov_b32 s98, {WS_FL+FA*2048}\nbuffer_load_dwordx2 v[16:17], v15, s[12:15], s98 offen {SC}")
        e(f"v_max3_f32 v8, v8, v{S+126}, v{S+127}\nv_max_f32 v8, v8, v9\nv_mov_b32 v9, v8\ns_nop 1\nv_permlane32_swap_b32 v8, v9\nv_max_f32 v8, v8, v9")
        for r in range(16): e(f"v_sub_f32 v{NM+r}, 0, v8")
        def re(t): e(f"s_cmp_lt_u32 s19, {8-t-it}\ns_cbranch_scc1 P2S{it}{t}\nv_mfma_f32_32x32x16_bf16 {vr(S+16*t,16)}, {Kf(t)}, {Q}, {vr(NM,16)}\nP2S{it}{t}:")
        st(k,f'p2max{it}'); re(1)
        for r in range(16): e(f"v_sub_f32 v{S+r}, v{S+r}, v8")
        first=[True]
        def pv(f,b):
            e(f"v_mfma_f32_32x32x16_bf16 {vr(O,16)}, {Vf(f)}, {vr(b,4)}, {'0' if first[0] else vr(O,16)}"); first[0]=False
        pend=[]
        for t in range(8):
            b=S+16*t
            for hf in range(2):
                for r in range(8*hf,8*hf+8):
                    e(f"v_exp_f32 v{b+r}, v{b+r}")
                    if r==8*hf+1 and pend: pv(*pend.pop(0))
                    if r==5 and 2<=t+2<8: re(t+2)
                    if r==13 and len(pend)>1: pv(*pend.pop(0))
                    if r%PFR==0 and PF and (it==1 or t>=PFS): e(PF.pop(0)); npf[0]+=1
                    if it==1 and t==4 and r==0: e(f's_waitcnt vmcnt({npf[0]})'); job_finish(k,'B',16)
                if hf==0 or t>0: e("s_nop 0")
                else: e("s_nop 0")
                for j in range(4): e(f"v_cvt_pk_bf16_f32 v{b+4*hf+j}, v{b+8*hf+2*j}, v{b+8*hf+2*j+1}")
                if t>0: pend.append((2*t+hf,b+4*hf))
            if t==0:
                for j in range(8): e(f"v_and_b32 v{S+8+j}, v{MK+j}, v{S+j}\nv_xor_b32 v{S+j}, v{S+8+j}, v{S+j}")
                pend+=[(0,S),(1,S+4),(16,S+8),(17,S+12)]
                if it==0:
                    e("s_waitcnt vmcnt(0)"); st(k,'p2v0')
                    e("v_cmp_ne_u64 vcc, s[96:97], v[16:17]\ns_cmp_eq_u64 vcc, 0\ns_cbranch_scc1 FAOK"); poll(k,[(15,WS_FL+FA*2048,0)],16); e("FAOK:")
                    st(k,'faok')
                    touch(k,1,WS_WO,'s6',65536,'s_and_b32 s98, s5, 7',8192,2048,16)
                    touch(k,2,WS_WGU,'s40',229376,'s_bfe_u32 s98, s5, 0x20001',57344,14336,56,(0,7168))
                    after_loads(T); PF=mid()
        e("s_nop 1")
        while pend: pv(*pend.pop(0))
        st(k,f'p2exp{it}')
        e(f"s_nop 7\ns_nop 3\nv_rcp_f32 v8, v{O+8}\ns_nop 0")
        for r in range(8): e(f"v_mul_f32 v{O+r}, v{O+r}, v8")
        for j in range(4): e(f"v_cvt_pk_bf16_f32 v{24+4*it+j}, v{O+2*j}, v{O+2*j+1}")
        if it==1:
            for x in PF: e(x)
        e(f"buffer_store_dwordx4 {vr(24+4*it,4)}, v2, s[12:15], s25 offen {SC}\ns_add_u32 s25, s25, 32768")
    st(k,'p2end')
    publish(k,F2); flag(k,FB,'s2')
def p2_cold(k):
    for it in range(2):
        for t in range(8):
            k.e(f"P2F{it}{t}:")
            for r in range(16): k.e(f"v_mov_b32 v{64+16*t+r}, {f2u(-1e30)}")
            k.e(f"s_branch P2N{it}{t}")
    k.e("PK_LAST:\ns_endpgm")
```

```python
from pk import *
NWD=int(os.environ.get('NWD','4')); M35=int(os.environ.get('M35','0')); ACC=16; BFR=64; LA=int(os.environ.get('LA','6')); FPOS=2*(16-LA); WS_CF=0xC0000
def ks_setup(k,ns,abase,wbase,ksteps,rbase,sa,sw):
    e=k.e
    e(f"s_mul_i32 s{sa}, s3, {2*ksteps*1024}\ns_mul_i32 s20, s4, {ns*1024}\ns_add_u32 s{sa}, s{sa}, s20\ns_add_u32 s{sa}, s{sa}, {abase}\ns_add_u32 s{sa+1}, s{sa}, {ksteps*1024}")
    e(f"s_mul_i32 s{sw}, s63, {2*ksteps*1024}\ns_add_u32 s{sw}, s{sw}, s20\ns_add_u32 s{sw}, s{sw}, {wbase}\ns_add_u32 s{sw+1}, s{sw}, {ksteps*1024}")
    e(f"s_bitcmp1_b32 s4, 1\ns_cselect_b32 s20, s{sa}, s{sa+1}\ns_cselect_b32 s{sa+1}, s{sa+1}, s{sa}\ns_mov_b32 s{sa}, s20\ns_bitcmp1_b32 s4, 0\ns_cselect_b32 s20, s{sw}, s{sw+1}\ns_cselect_b32 s{sw+1}, s{sw+1}, s{sw}\ns_mov_b32 s{sw}, s20")
def ks_pos(k,rbase,v0=4):
    e=k.e
    for i in range(4): e(f"s_xor_b32 s20, s4, {3-i}\ns_mul_i32 s20, s20, 12288\ns_add_u32 s20, s20, {rbase}\nv_add_u32 v{v0+i}, s20, v2")
    e("s_lshr_b32 s22, s4, 1\ns_lshl_b32 s21, s3, 1\ns_add_u32 s22, s22, s21\ns_and_b32 s23, s4, 1\ns_lshl_b32 s21, s63, 1\ns_add_u32 s23, s23, s21")
    e("v_and_b32 v10, 31, v1\nv_lshrrev_b32 v11, 5, v1\nv_lshlrev_b32 v10, 10, v10\nv_lshl_add_u32 v10, v11, 4, v10\nv_lshlrev_b32 v11, 4, v11")
def ld2(reg,p,sg,s):
    return [f"buffer_load_dwordx4 {vr(reg+4*i,4,p)}, v2, s[12:15], s{sg+i} offen offset:{(s&3)*1024} {SC}"+(f"\ns_add_u32 s{sg+i}, s{sg+i}, 4096" if s&3==3 else "") for i in range(2)]
def ld5(reg,p,sg,s):
    o,last=((s&3),(s&3)==3) if s<16 else ((s-16)%3,(s-16)%3==2)
    inc=7168 if s!=15 else (4096-3*7168)&0xffffffff
    return [f"buffer_load_dwordx4 {vr(reg+4*i,4,p)}, v2, s[12:15], s{sg+i} offen offset:{o*1024} {SC}"+(f"\ns_add_u32 s{sg+i}, s{sg+i}, {inc}" if last else "") for i in range(2)]
def ks_main(k,ns,sa,areg,ap,depth,wreg,post=None):
    e=k.e; T=Trk(k); Q=[]
    for s in range(ns): Q+=[(x,(s,i)) for i,x in enumerate((ld5 if ns==28 else ld2)(areg+8*(s%depth),ap,sa,s))]
    if ns==28: Q.insert(FPOS,(f"s_mov_b32 s98, {WS_FL+F4*2048}\nbuffer_load_dwordx2 v[14:15], v12, s[12:15], s98 offen {SC}",'f'))
    def issue(n):
        for _ in range(n):
            if Q:
                if Q[0][1]==(16,0) and not chk[0]: return
                x,g=Q.pop(0); T.op('vm',x,g)
                if g=='f': issue(1)
    chk=[False]
    issue(2*LA if ns==28 else 16)
    if post: post(T)
    for s in range(ns):
        a=areg+8*(s%depth)
        for t in range(2):
            if ns==28 and t==0 and s==FPOS//2:
                T.wait('vm','f'); e("v_cmp_ne_u64 vcc, s[96:97], v[14:15]\ns_cmp_eq_u64 vcc, 0\ns_cbranch_scc1 F4OK"); poll(k,[(12,WS_FL+F4*2048,0)],96); e("F4OK:"); st(k,'f4ok')
                chk[0]=True
                if TM&32: T.op('vm',f"buffer_load_dword v100, v13, s[12:15], s33 offen {SC}",'t')
            T.wait('vm',(s,t))
            if t==0 and s in (0,12): st(k,f'ks{ns}_{s}')
            for bb in range(2):
                d=vr(ACC+16*(2*t+bb),16)
                e(f"v_mfma_f32_32x32x16_bf16 {d}, {vr(wreg(s)+4*bb,4,'a')}, {vr(a+4*t,4,ap)}, {'0' if s==0 else d}")
            issue(1)
    st(k,f"ks{ns}_mm")
    if ns==8:
        for g in range(NB2,7):
            for x in b1(g): e(x)
    e("s_nop 9")
    for i in range(3):
        for qd in range(4): e(f"ds_write_b128 v7, {vr(ACC+16*i+4*qd,4)} offset:{i*4096+qd*1024}")
    e("s_waitcnt lgkmcnt(0)\ns_barrier")
    for i in range(3):
        for qd in range(4): e(f"ds_read_b128 {vr(ACC+16*i+4*qd,4)}, v{4+i} offset:{i*4096+qd*1024}")
    for i in range(3):
        for qd in range(4):
            e(f"s_waitcnt lgkmcnt({11-4*i-qd})")
            for r in range(4*qd,4*qd+4,2): e(f"v_pk_add_f32 {vr(BFR+r,2)}, {vr(BFR+r,2)}, {vr(ACC+16*i+r,2)}")
def b_issue(k,T):
    e=k.e
    job_issue(k,'B',JB)
    e("s_mov_b32 s57, 0x7f000000\ns_cmp_lt_u32 s2, 112\ns_cbranch_scc1 BI4\ns_cmp_ge_u32 s2, 224\ns_cbranch_scc1 BI4")
    e("s_sub_u32 s44, s2, 112")
    k.srds([('wg',48),('wu',52)])
    e(f"v_lshrrev_b32 v12, 2, v1\nv_and_b32 v13, 3, v1\nv_mul_u32_u24 v12, 3584, v12\nv_lshl_add_u32 v12, v13, 4, v12\ns_waitcnt lgkmcnt(0)\ns_cmp_ge_u32 s44, 56\ns_cselect_b32 s48, s52, s48\ns_cselect_b32 s49, s53, s49\ns_cselect_b32 s58, 56, 0\ns_cselect_b32 s45, 1024, 0\ns_sub_u32 s44, s44, s58")
    e(f"s_mul_i32 s58, s4, {128*3584}\ns_lshl_b32 s59, s44, 6\ns_add_u32 s58, s58, s59")
    for i in range(8): e(f"buffer_load_dwordx4 {vr(32+4*i,4)}, v12, s[48:51], s58 offen\ns_add_u32 s58, s58, {16*3584}")
    e("BI4:")
def cs_finish(k):
    e=k.e
    e(f"s_cmp_lt_u32 s2, 112\ns_cbranch_scc1 CS9\ns_cmp_ge_u32 s2, 224\ns_cbranch_scc1 CS9")
    e(f"s_lshl_b32 s57, s4, 11\ns_add_u32 s57, s57, {JB}\nv_lshlrev_b32 v12, 5, v1\nv_add_u32 v12, s57, v12")
    e("ds_write_b128 v12, v[176:179]\nds_write_b128 v12, v[180:183] offset:16\nds_write_b128 v12, v[184:187] offset:8192\nds_write_b128 v12, v[188:191] offset:8208")
    e("s_waitcnt lgkmcnt(0)\ns_barrier\ns_cmp_ge_u32 s4, 2\ns_cbranch_scc1 CS8")
    e(f"v_and_b32 v13, 31, v1\nv_lshrrev_b32 v14, 5, v1\nv_lshlrev_b32 v12, 2, v13\nv_lshl_add_u32 v12, v14, 12, v12\ns_lshl_b32 s57, s4, 13\ns_add_u32 s57, s57, {JB}\nv_add_u32 v12, s57, v12")
    for j in range(32): e(f"ds_read_b32 v{16+j}, v12 offset:{j*128}")
    e("s_waitcnt lgkmcnt(0)")
    for sz in (16,8,4,2,1):
        for j in range(sz): e(f"v_add_f32 v{16+j}, v{16+j}, v{16+j+sz}")
    e("v_mov_b32 v17, v16\ns_nop 1\nv_permlane32_swap_b32 v16, v17\nv_add_f32 v16, v16, v17")
    e("v_cvt_pk_bf16_f32 v18, v16, v16\nv_lshlrev_b32 v17, 16, v18\nv_sub_f32 v17, v16, v17\nv_cvt_pk_bf16_f32 v19, v17, 0")
    e("v_lshrrev_b32 v14, 4, v13\nv_and_b32 v13, 15, v13\nv_lshlrev_b32 v13, 4, v13\nv_lshl_add_u32 v13, v14, 9, v13")
    e(f"s_lshl_b32 s57, s44, 10\ns_lshr_b32 s58, s45, 2\ns_add_u32 s57, s57, s58\ns_xor_b32 s58, s4, 1\ns_lshl_b32 s58, s58, 3\ns_add_u32 s57, s57, s58\ns_add_u32 s57, s57, {WS_CF}\nbuffer_store_dwordx2 v[18:19], v13, s[12:15], s57 offen {SC}\nCS8:\ns_barrier\nCS9:")
def b1(g):
    return [("s_mov_b32 m0, s43\ns_nop 0\n" if i==0 else "")+f"buffer_load_dwordx4 v2, s[12:15], s42 offen offset:{i*1024} {SC} lds"+("\ns_add_u32 s42, s42, 16384\ns_add_u32 s43, s43, 16384" if i==3 else "") for i in range(4)]
NB1=int(os.environ.get('NB1','4'))
NB2=int(os.environ.get('NB2','7'))
def p3_pref(k):
    e=k.e
    if M35: e("s_and_b32 s3, s2, 7\ns_lshl_b32 s3, s3, 2\ns_lshr_b32 s63, s2, 6\ns_add_u32 s3, s3, s63\ns_bfe_u32 s63, s2, 0x30003")
    else: e("s_mov_b32 s3, s5\ns_mov_b32 s63, s6")
    ks_setup(k,8,WS_O,WS_WO,32,0,16,26); ks_pos(k,114688,4)
    e(f"s_and_b32 s40, s5, 1\ns_lshl_b32 s40, s40, 3\ns_add_u32 s40, s40, s6\ns_mul_i32 s41, s40, 229376\ns_add_u32 s41, s41, {WS_WGU}\ns_lshl_b32 s43, s4, 12\ns_add_u32 s42, s41, s43")
    e(f"s_lshl_b32 s28, s22, 15\ns_lshl_b32 s29, s23, 6\ns_add_u32 s28, s28, s29\ns_lshl_b32 s29, s23, 7\ns_add_u32 s30, s29, 4096\ns_add_u32 s31, s29, 8192")
    e(f"v_and_b32 v15, 0x3c, v1\ns_lshl_b32 s57, s4, 9\ns_add_u32 s57, s57, {1536*4}\ns_cmp_lt_u32 s2, 112\ns_cbranch_scc1 PF9\ns_cmp_ge_u32 s2, 224\ns_cbranch_scc1 PF9")
    for i in range(8): e(f"buffer_load_dword a{232+i}, v15, s[12:15], s57 offen offset:{64*i} {SC}\nbuffer_load_dword a{240+i}, v15, s[12:15], s57 offen offset:{2048+64*i} {SC}")
    e("PF9:")
    L=[]
    for s in range(8): L+=ld2(128+8*s,'a',26,s)
    L+=[f"buffer_load_dwordx4 {vr(192+4*q,4,'a')}, v10, s[8:11], s28 offen offset:{32*q}" for q in range(2)]
    for q in range(4): L+=[f"buffer_load_dwordx4 {vr(200+4*q,4,'a')}, v11, s[12:15], s30 offen offset:{32*q} {SC}",f"buffer_load_dwordx4 {vr(216+4*q,4,'a')}, v11, s[12:15], s31 offen offset:{32*q} {SC}"]
    for g in range(NB1): L+=b1(g)
    return L
def p3(k):
    e=k.e
    X=80; GA=88; CB=104
    for g in range(NB1,NB2):
        for x in b1(g): e(x)
    e("v_and_b32 v12, 7, v1\nv_lshlrev_b32 v12, 3, v12\ns_lshl_b32 s28, s3, 6\nv_add_u32 v12, s28, v12\ns_lshl_b32 s35, s3, 3\ns_add_u32 s35, s35, s63")
    st(k,'p3pre')
    poll(k,[(12,WS_FL+F2*2048,0)],one=True)
    st(k,'f2ok')
    touch(k,4,WS_O,'s5',65536,'s_and_b32 s98, s6, 3',16384,4096,32)
    def post(T):
        for r in range(40): e(f"v_accvgpr_read_b32 v{80+r}, a{192+r}")
        for q in range(2): e(f"v_permlane32_swap_b32 v{X+4*q}, v{X+4*q+2}\nv_permlane32_swap_b32 v{X+4*q+1}, v{X+4*q+3}")
        for j in range(8): unpack(k,192+2*j,X+j)
        e("s_cmp_lt_u32 s2, 112\ns_cbranch_scc1 CV9\ns_cmp_ge_u32 s2, 224\ns_cbranch_scc1 CV9")
        for r in range(16): e(f"v_accvgpr_read_b32 v{128+r}, a{232+r}")
        for i in range(8):
            for j in range(4):
                unpack(k,14,32+4*i+j)
                for d,c in ((176,136),(184,128)):
                    if i==0: e(f"v_pk_mul_f32 {vr(d+2*j,2)}, v[14:15], {vr(c,2)} op_sel_hi:[1,0]")
                    else: e(f"v_pk_fma_f32 {vr(d+2*j,2)}, v[14:15], {vr(c+(i&~1),2)}, {vr(d+2*j,2)} op_sel:[0,{i&1},0] op_sel_hi:[1,{i&1},1]")
        e("CV9:")
    ks_main(k,8,16,0,'a',9,lambda s:128+8*s,post)
    st(k,'p3red')
    R=BFR
    e(f"s_lshl_b32 s28, s22, 15\ns_lshl_b32 s29, s23, 11\ns_add_u32 s28, s28, s29\ns_add_u32 s29, s28, {WS_Y2}")
    for j in range(8):
        e(f"v_pk_fma_f32 v[14:15], {vr(R+2*j,2)}, {vr(GA+2*j,2)}, {vr(192+2*j,2)}\nv_cvt_pk_bf16_f32 v{16+j}, v14, v15")
        unpack(k,208+2*j,16+j)
        e(f"v_pk_mul_f32 v[14:15], {vr(208+2*j,2)}, {vr(CB+2*j,2)}\nv_cvt_pk_bf16_f32 v{24+j}, v14, v15")
        if j&3==3: e(f"buffer_store_dwordx4 {vr(21+j,4)}, v2, s[12:15], s29 offen offset:{(j>>2)*1024} {SC}")
    e("v_pk_add_f32 v[36:37], v[208:209], v[210:211]\nv_pk_mul_f32 v[38:39], v[208:209], v[208:209]")
    for j in range(1,8):
        if j>1: e(f"v_pk_add_f32 v[36:37], v[36:37], {vr(208+2*j,2)}")
        e(f"v_pk_fma_f32 v[38:39], {vr(208+2*j,2)}, {vr(208+2*j,2)}, v[38:39]")
    e("v_add_f32 v12, v36, v37\nv_add_f32 v13, v38, v39")
    e(f"s_lshl_b32 s28, s22, 12\ns_lshl_b32 s29, s23, 8\ns_add_u32 s28, s28, s29\ns_add_u32 s28, s28, {WS_ST}\nv_and_b32 v3, 31, v1\nv_lshlrev_b32 v3, 3, v3")
    e("v_mov_b32 v14, v12\nv_mov_b32 v15, v13\ns_nop 1\nv_permlane32_swap_b32 v12, v14\nv_permlane32_swap_b32 v13, v15\nv_add_f32 v12, v12, v14\nv_add_f32 v13, v13, v15")
    e(f"buffer_store_dwordx2 v[12:13], v3, s[12:15], s28 offen {SC}")
    for j in range(8): e(f"v_mov_b32 v{112+j}, v{16+j}")
    e(f"v_and_b32 v34, 15, v1\nv_min_u32 v34, 13, v34\nv_lshlrev_b32 v34, 3, v34\nv_add_u32 v34, s63, v34\nv_lshlrev_b32 v34, 3, v34\ns_mov_b32 s98, {WS_FL+FB*2048}\nbuffer_load_dwordx2 v[32:33], v34, s[12:15], s98 offen {SC}")
    ks_setup(k,28,WS_HH,WS_WD,112,0,38,36)
    st(k,'p3end'); publish(k,F3,'s35')
    for x in b1(7): e(x)
    e("v_mov_b32 v120, v32\nv_mov_b32 v121, v33\nv_mov_b32 v122, v34"); cs_finish(k); st(k,'jobB')
    e("v_cmp_ne_u64 vcc, s[96:97], v[120:121]\ns_cmp_eq_u64 vcc, 0\ns_cbranch_scc1 FBOK"); poll(k,[(122,WS_FL+FB*2048,0)],36); e("FBOK:")
    touch(k,8,WS_WD,'s6',229376,'s_and_b32 s98, s5, 7',28672,7168,56)
    for s in range(NWD):
        for x in ld5(128+8*s,'a',36,s): e(x)
def p5(k):
    e=k.e
    X=112; GB=80
    ks_pos(k,0)
    k.srds([('out',24)])
    e("s_lshl_b32 s29, s23, 7\ns_add_u32 s30, s29, 10240")
    for q in range(4): e(f"buffer_load_dwordx4 {vr(GB+4*q,4)}, v11, s[12:15], s30 offen offset:{32*q} {SC}")
    e("v_cmp_ne_u64 vcc, s[96:97], v[14:15]\ns_cmp_eq_u64 vcc, 0\ns_cbranch_scc1 F4AOK"); poll(k,[(12,WS_FL+F4A*2048,0)],96); e("F4AOK:")
    st(k,'p5pre')
    if TM&32:
        e(f"s_and_b32 s34, s6, 3\ns_lshl_b32 s34, s34, 2\ns_add_u32 s34, s34, s4\ns_mul_i32 s34, s34, 14336\ns_mul_i32 s33, s5, 229376\ns_add_u32 s34, s34, s33\ns_add_u32 s34, s34, {WS_HH}\ns_add_u32 s33, s34, 4096")
        e(f"v_lshrrev_b32 v3, 5, v1\nv_mul_u32_u24 v3, 7168, v3\nv_and_b32 v9, 31, v1\nv_min_u32 v13, 23, v9\nv_lshl_add_u32 v13, v13, 7, v3\nv_lshl_add_u32 v3, v9, 7, v3\nbuffer_load_dword v100, v3, s[12:15], s34 offen {SC}")
    ks_main(k,28,38,120,'v',17,lambda s: 128+8*s if s<16 else 8*(s-16))
    st(k,'p5red')
    R=BFR
    for j in range(8):
        unpack(k,14,X+j)
        e(f"v_fma_f32 v14, v{R+2*j}, v{GB+2*j}, v14\nv_fma_f32 v15, v{R+2*j+1}, v{GB+2*j+1}, v15\nv_cvt_pk_bf16_f32 v{16+j}, v14, v15")
    e("s_lshl_b32 s28, s22, 15\ns_lshl_b32 s29, s23, 6\ns_add_u32 s28, s28, s29")
    e("v_permlane32_swap_b32 v16, v18\nv_permlane32_swap_b32 v17, v19\nv_permlane32_swap_b32 v20, v22\nv_permlane32_swap_b32 v21, v23")
    e("buffer_store_dwordx4 v[16:19], v10, s[24:27], s28 offen\nbuffer_store_dwordx4 v[20:23], v10, s[24:27], s28 offen offset:32")
    e(f"s_or_b32 s28, s2, s4\ns_cmp_lg_u32 s28, 0\ns_cbranch_scc1 P5E\nv_mov_b32 v12, s96\nv_mov_b32 v13, s97\nv_mov_b32 v14, 0\ns_mov_b32 s28, {WS_NONCE}\nbuffer_store_dwordx2 v[12:13], v14, s[12:15], s28 offen\nP5E:")
```

```python
from pk import *
NWD=int(os.environ.get('NWD','0')); M35=int(os.environ.get('M35','0')); ACC=16; BFR=64; LA=int(os.environ.get('LA','6')); FPOS=2*(16-LA); WS_CF=0xC0000
def ks_setup(k,ns,abase,wbase,ksteps,rbase,sa,sw):
    e=k.e
    e(f"s_mul_i32 s{sa}, s3, {2*ksteps*1024}\ns_mul_i32 s20, s4, {ns*1024}\ns_add_u32 s{sa}, s{sa}, s20\ns_add_u32 s{sa}, s{sa}, {abase}\ns_add_u32 s{sa+1}, s{sa}, {ksteps*1024}")
    e(f"s_mul_i32 s{sw}, s63, {2*ksteps*1024}\ns_add_u32 s{sw}, s{sw}, s20\ns_add_u32 s{sw}, s{sw}, {wbase}\ns_add_u32 s{sw+1}, s{sw}, {ksteps*1024}")
    e(f"s_bitcmp1_b32 s4, 1\ns_cselect_b32 s20, s{sa}, s{sa+1}\ns_cselect_b32 s{sa+1}, s{sa+1}, s{sa}\ns_mov_b32 s{sa}, s20\ns_bitcmp1_b32 s4, 0\ns_cselect_b32 s20, s{sw}, s{sw+1}\ns_cselect_b32 s{sw+1}, s{sw+1}, s{sw}\ns_mov_b32 s{sw}, s20")
def ks_pos(k,rbase,v0=4):
    e=k.e
    for i in range(4): e(f"s_xor_b32 s20, s4, {3-i}\ns_mul_i32 s20, s20, 12288\ns_add_u32 s20, s20, {rbase}\nv_add_u32 v{v0+i}, s20, v2")
    e("s_lshr_b32 s22, s4, 1\ns_lshl_b32 s21, s3, 1\ns_add_u32 s22, s22, s21\ns_and_b32 s23, s4, 1\ns_lshl_b32 s21, s63, 1\ns_add_u32 s23, s23, s21")
    e("v_and_b32 v10, 31, v1\nv_lshrrev_b32 v11, 5, v1\nv_lshlrev_b32 v10, 10, v10\nv_lshl_add_u32 v10, v11, 4, v10\nv_lshlrev_b32 v11, 4, v11")
def ld2(reg,p,sg,s):
    return [f"buffer_load_dwordx4 {vr(reg+4*i,4,p)}, v2, s[12:15], s{sg+i} offen offset:{(s&3)*1024} {SC}"+(f"\ns_add_u32 s{sg+i}, s{sg+i}, 4096" if s&3==3 else "") for i in range(2)]
def ld5(reg,p,sg,s):
    o,last=((s&3),(s&3)==3) if s<16 else ((s-16)%3,(s-16)%3==2)
    inc=7168 if s!=15 else (4096-3*7168)&0xffffffff
    return [f"buffer_load_dwordx4 {vr(reg+4*i,4,p)}, v2, s[12:15], s{sg+i} offen offset:{o*1024} {SC}"+(f"\ns_add_u32 s{sg+i}, s{sg+i}, {inc}" if last else "") for i in range(2)]
def ks_main(k,ns,sa,areg,ap,depth,wreg,post=None):
    e=k.e; T=Trk(k); Q=[]
    for s in range(ns): Q+=[(x,(s,i)) for i,x in enumerate((ld5 if ns==28 else ld2)(areg+8*(s%depth),ap,sa,s))]
    if ns==28: Q.insert(FPOS,(f"s_mov_b32 s98, {WS_FL+F4*2048}\nbuffer_load_dwordx2 v[14:15], v12, s[12:15], s98 offen {SC}",'f'))
    def issue(n):
        for _ in range(n):
            if Q:
                if Q[0][1]==(16,0) and not chk[0]: return
                x,g=Q.pop(0); T.op('vm',x,g)
                if g=='f': issue(1)
    chk=[False]
    issue(2*LA if ns==28 else 16)
    if post: post(T)
    for s in range(ns-4):
        a=areg+8*(s%depth)
        for t in range(2):
            if ns==28 and t==0 and s==FPOS//2:
                T.wait('vm','f'); e("v_cmp_ne_u64 vcc, s[96:97], v[14:15]\ns_cmp_eq_u64 vcc, 0\ns_cbranch_scc1 F4OK"); poll(k,[(12,WS_FL+F4*2048,0)],96); e("F4OK:"); st(k,'f4ok')
                chk[0]=True
                if TM&32: T.op('vm',f"buffer_load_dword v100, v13, s[12:15], s33 offen {SC}",'t')
            T.wait('vm',(s,t))
            if t==0 and s in (0,12): st(k,f'ks{ns}_{s}')
            for bb in range(2):
                d=vr(ACC+16*(2*t+bb),16)
                e(f"v_mfma_f32_32x32x16_bf16 {d}, {vr(wreg(s)+4*bb,4,'a')}, {vr(a+4*t,4,ap)}, {'0' if s==0 else d}")
            issue(1)
    assert not Q and NB2==7
    for i in range(4):
        d=vr(ACC+16*i,16)
        for n,s in enumerate(range(ns-4,ns)):
            T.wait('vm',(s,i>>1))
            e(f"v_mfma_f32_32x32x16_bf16 {d}, {vr(wreg(s)+4*(i&1),4,'a')}, {vr(areg+8*(s%depth)+4*(i>>1),4,ap)}, {d}")
            if i>0:
                if n==0: e("s_nop 7")
                if n==1: e("s_nop 1")
                if n in (1,2):
                    for qd in (2*n-2,2*n-1): e(f"ds_write_b128 v7, {vr(ACC+16*(i-1)+4*qd,4)} offset:{(i-1)*4096+qd*1024}")
    st(k,f"ks{ns}_mm")
    e("s_waitcnt lgkmcnt(0)\ns_barrier")
    for i in range(3):
        for qd in range(4): e(f"ds_read_b128 {vr(ACC+16*i+4*qd,4)}, v{4+i} offset:{i*4096+qd*1024}")
    for i in range(3):
        for qd in range(4):
            e(f"s_waitcnt lgkmcnt({11-4*i-qd})")
            for r in range(4*qd,4*qd+4,2): e(f"v_pk_add_f32 {vr(BFR+r,2)}, {vr(BFR+r,2)}, {vr(ACC+16*i+r,2)}")
def b_issue(k,T):
    e=k.e
    job_issue(k,'B',JB)
    e("s_mov_b32 s57, 0x7f000000\ns_cmp_lt_u32 s2, 112\ns_cbranch_scc1 BI4\ns_cmp_ge_u32 s2, 224\ns_cbranch_scc1 BI4")
    e("s_sub_u32 s44, s2, 112")
    k.srds([('wg',48),('wu',52)])
    e(f"v_lshrrev_b32 v12, 2, v1\nv_and_b32 v13, 3, v1\nv_mul_u32_u24 v12, 3584, v12\nv_lshl_add_u32 v12, v13, 4, v12\ns_waitcnt lgkmcnt(0)\ns_cmp_ge_u32 s44, 56\ns_cselect_b32 s48, s52, s48\ns_cselect_b32 s49, s53, s49\ns_cselect_b32 s58, 56, 0\ns_cselect_b32 s45, 1024, 0\ns_sub_u32 s44, s44, s58")
    e(f"s_mul_i32 s58, s4, {128*3584}\ns_lshl_b32 s59, s44, 6\ns_add_u32 s58, s58, s59")
    for i in range(8): e(f"buffer_load_dwordx4 {vr(32+4*i,4)}, v12, s[48:51], s58 offen\ns_add_u32 s58, s58, {16*3584}")
    e("BI4:")
def cs_finish(k):
    e=k.e
    e(f"s_cmp_lt_u32 s2, 112\ns_cbranch_scc1 CS9\ns_cmp_ge_u32 s2, 224\ns_cbranch_scc1 CS9")
    e(f"s_lshl_b32 s57, s4, 11\ns_add_u32 s57, s57, {JB}\nv_lshlrev_b32 v12, 5, v1\nv_add_u32 v12, s57, v12")
    e("ds_write_b128 v12, v[176:179]\nds_write_b128 v12, v[180:183] offset:16\nds_write_b128 v12, v[184:187] offset:8192\nds_write_b128 v12, v[188:191] offset:8208")
    e("s_waitcnt lgkmcnt(0)\ns_barrier\ns_cmp_ge_u32 s4, 2\ns_cbranch_scc1 CS8")
    e(f"v_and_b32 v13, 31, v1\nv_lshrrev_b32 v14, 5, v1\nv_lshlrev_b32 v12, 2, v13\nv_lshl_add_u32 v12, v14, 12, v12\ns_lshl_b32 s57, s4, 13\ns_add_u32 s57, s57, {JB}\nv_add_u32 v12, s57, v12")
    for j in range(32): e(f"ds_read_b32 v{16+j}, v12 offset:{j*128}")
    e("s_waitcnt lgkmcnt(0)")
    for sz in (16,8,4,2,1):
        for j in range(sz): e(f"v_add_f32 v{16+j}, v{16+j}, v{16+j+sz}")
    e("v_mov_b32 v17, v16\ns_nop 1\nv_permlane32_swap_b32 v16, v17\nv_add_f32 v16, v16, v17")
    e("v_cvt_pk_bf16_f32 v18, v16, v16\nv_lshlrev_b32 v17, 16, v18\nv_sub_f32 v17, v16, v17\nv_cvt_pk_bf16_f32 v19, v17, 0")
    e("v_lshrrev_b32 v14, 4, v13\nv_and_b32 v13, 15, v13\nv_lshlrev_b32 v13, 4, v13\nv_lshl_add_u32 v13, v14, 9, v13")
    e(f"s_lshl_b32 s57, s44, 10\ns_lshr_b32 s58, s45, 2\ns_add_u32 s57, s57, s58\ns_xor_b32 s58, s4, 1\ns_lshl_b32 s58, s58, 3\ns_add_u32 s57, s57, s58\ns_add_u32 s57, s57, {WS_CF}\nbuffer_store_dwordx2 v[18:19], v13, s[12:15], s57 offen {SC}\nCS8:\ns_barrier\nCS9:")
def b1(g):
    return [("s_mov_b32 m0, s43\ns_nop 0\n" if i==0 else "")+f"buffer_load_dwordx4 v2, s[12:15], s42 offen offset:{i*1024} {SC} lds"+("\ns_add_u32 s42, s42, 16384\ns_add_u32 s43, s43, 16384" if i==3 else "") for i in range(4)]
NB1=int(os.environ.get('NB1','4'))
NB2=int(os.environ.get('NB2','7'))
def p3_pref(k):
    e=k.e
    if M35: e("s_and_b32 s3, s2, 7\ns_lshl_b32 s3, s3, 2\ns_lshr_b32 s63, s2, 6\ns_add_u32 s3, s3, s63\ns_bfe_u32 s63, s2, 0x30003")
    else: e("s_mov_b32 s3, s5\ns_mov_b32 s63, s6")
    ks_setup(k,8,WS_O,WS_WO,32,0,16,26); ks_pos(k,114688,4)
    e(f"s_and_b32 s40, s5, 1\ns_lshl_b32 s40, s40, 3\ns_add_u32 s40, s40, s6\ns_mul_i32 s41, s40, 229376\ns_add_u32 s41, s41, {WS_WGU}\ns_lshl_b32 s43, s4, 12\ns_add_u32 s42, s41, s43")
    e(f"s_lshl_b32 s28, s22, 15\ns_lshl_b32 s29, s23, 6\ns_add_u32 s28, s28, s29\ns_lshl_b32 s29, s23, 7\ns_add_u32 s30, s29, 4096\ns_add_u32 s31, s29, 8192")
    e(f"v_and_b32 v15, 0x3c, v1\ns_lshl_b32 s57, s4, 9\ns_add_u32 s57, s57, {1536*4}\ns_cmp_lt_u32 s2, 112\ns_cbranch_scc1 PF9\ns_cmp_ge_u32 s2, 224\ns_cbranch_scc1 PF9")
    for i in range(8): e(f"buffer_load_dword a{232+i}, v15, s[12:15], s57 offen offset:{64*i} {SC}\nbuffer_load_dword a{240+i}, v15, s[12:15], s57 offen offset:{2048+64*i} {SC}")
    e("PF9:")
    L=[]
    for s in range(8): L+=ld2(128+8*s,'a',26,s)
    L+=[f"buffer_load_dwordx4 {vr(192+4*q,4,'a')}, v10, s[8:11], s28 offen offset:{32*q}" for q in range(2)]
    for q in range(4): L+=[f"buffer_load_dwordx4 {vr(200+4*q,4,'a')}, v11, s[12:15], s30 offen offset:{32*q} {SC}",f"buffer_load_dwordx4 {vr(216+4*q,4,'a')}, v11, s[12:15], s31 offen offset:{32*q} {SC}"]
    for g in range(NB1): L+=b1(g)
    return L
def p3(k):
    e=k.e
    X=80; GA=88; CB=104
    for g in range(NB1,NB2):
        for x in b1(g): e(x)
    e("v_and_b32 v12, 7, v1\nv_lshlrev_b32 v12, 3, v12\ns_lshl_b32 s28, s3, 6\nv_add_u32 v12, s28, v12\ns_lshl_b32 s35, s3, 3\ns_add_u32 s35, s35, s63")
    st(k,'p3pre')
    poll(k,[(12,WS_FL+F2*2048,0)],one=True)
    st(k,'f2ok')
    touch(k,4,WS_O,'s5',65536,'s_and_b32 s98, s6, 3',16384,4096,32)
    def post(T):
        for r in range(40): e(f"v_accvgpr_read_b32 v{80+r}, a{192+r}")
        for q in range(2): e(f"v_permlane32_swap_b32 v{X+4*q}, v{X+4*q+2}\nv_permlane32_swap_b32 v{X+4*q+1}, v{X+4*q+3}")
        for j in range(8): unpack(k,192+2*j,X+j)
        e("s_cmp_lt_u32 s2, 112\ns_cbranch_scc1 CV9\ns_cmp_ge_u32 s2, 224\ns_cbranch_scc1 CV9")
        for r in range(16): e(f"v_accvgpr_read_b32 v{128+r}, a{232+r}")
        for i in range(8):
            for j in range(4):
                unpack(k,14,32+4*i+j)
                for d,c in ((176,136),(184,128)):
                    if i==0: e(f"v_pk_mul_f32 {vr(d+2*j,2)}, v[14:15], {vr(c,2)} op_sel_hi:[1,0]")
                    else: e(f"v_pk_fma_f32 {vr(d+2*j,2)}, v[14:15], {vr(c+(i&~1),2)}, {vr(d+2*j,2)} op_sel:[0,{i&1},0] op_sel_hi:[1,{i&1},1]")
        e("CV9:")
    ks_main(k,8,16,0,'a',9,lambda s:128+8*s,post)
    st(k,'p3red')
    R=BFR
    e(f"s_lshl_b32 s28, s22, 15\ns_lshl_b32 s29, s23, 11\ns_add_u32 s28, s28, s29\ns_add_u32 s29, s28, {WS_Y2}")
    for j in range(8):
        e(f"v_pk_fma_f32 v[14:15], {vr(R+2*j,2)}, {vr(GA+2*j,2)}, {vr(192+2*j,2)}\nv_cvt_pk_bf16_f32 v{16+j}, v14, v15")
        unpack(k,208+2*j,16+j)
        e(f"v_pk_mul_f32 v[14:15], {vr(208+2*j,2)}, {vr(CB+2*j,2)}\nv_cvt_pk_bf16_f32 v{24+j}, v14, v15")
        if j&3==3: e(f"buffer_store_dwordx4 {vr(21+j,4)}, v2, s[12:15], s29 offen offset:{(j>>2)*1024} {SC}")
    e("v_pk_add_f32 v[36:37], v[208:209], v[210:211]\nv_pk_mul_f32 v[38:39], v[208:209], v[208:209]")
    for j in range(1,8):
        if j>1: e(f"v_pk_add_f32 v[36:37], v[36:37], {vr(208+2*j,2)}")
        e(f"v_pk_fma_f32 v[38:39], {vr(208+2*j,2)}, {vr(208+2*j,2)}, v[38:39]")
    e("v_add_f32 v12, v36, v37\nv_add_f32 v13, v38, v39")
    e(f"s_lshl_b32 s28, s22, 12\ns_lshl_b32 s29, s23, 8\ns_add_u32 s28, s28, s29\ns_add_u32 s28, s28, {WS_ST}\nv_and_b32 v3, 31, v1\nv_lshlrev_b32 v3, 3, v3")
    e("v_mov_b32 v14, v12\nv_mov_b32 v15, v13\ns_nop 1\nv_permlane32_swap_b32 v12, v14\nv_permlane32_swap_b32 v13, v15\nv_add_f32 v12, v12, v14\nv_add_f32 v13, v13, v15")
    e(f"buffer_store_dwordx2 v[12:13], v3, s[12:15], s28 offen {SC}")
    for j in range(8): e(f"v_mov_b32 v{112+j}, v{16+j}")
    e(f"v_and_b32 v34, 15, v1\nv_min_u32 v34, 13, v34\nv_lshlrev_b32 v34, 3, v34\nv_add_u32 v34, s63, v34\nv_lshlrev_b32 v34, 3, v34\ns_mov_b32 s98, {WS_FL+FB*2048}\nbuffer_load_dwordx2 v[32:33], v34, s[12:15], s98 offen {SC}")
    ks_setup(k,28,WS_HH,WS_WD,112,0,38,36)
    st(k,'p3end'); publish(k,F3,'s35')
    for x in b1(7): e(x)
    e("v_mov_b32 v120, v32\nv_mov_b32 v121, v33\nv_mov_b32 v122, v34"); cs_finish(k); st(k,'jobB')
    e("v_cmp_ne_u64 vcc, s[96:97], v[120:121]\ns_cmp_eq_u64 vcc, 0\ns_cbranch_scc1 FBOK"); poll(k,[(122,WS_FL+FB*2048,0)],36); e("FBOK:")
    touch(k,8,WS_WD,'s6',229376,'s_and_b32 s98, s5, 7',28672,7168,56)
    for s in range(NWD):
        for x in ld5(128+8*s,'a',36,s): e(x)
def p5(k):
    e=k.e
    X=112; GB=80
    ks_pos(k,0)
    k.srds([('out',24)])
    e("s_lshl_b32 s29, s23, 7\ns_add_u32 s30, s29, 10240")
    for q in range(4): e(f"buffer_load_dwordx4 {vr(GB+4*q,4)}, v11, s[12:15], s30 offen offset:{32*q} {SC}")
    e("v_cmp_ne_u64 vcc, s[96:97], v[14:15]\ns_cmp_eq_u64 vcc, 0\ns_cbranch_scc1 F4AOK"); poll(k,[(12,WS_FL+F4A*2048,0)],96); e("F4AOK:")
    st(k,'p5pre')
    if TM&32:
        e(f"s_and_b32 s34, s6, 3\ns_lshl_b32 s34, s34, 2\ns_add_u32 s34, s34, s4\ns_mul_i32 s34, s34, 14336\ns_mul_i32 s33, s5, 229376\ns_add_u32 s34, s34, s33\ns_add_u32 s34, s34, {WS_HH}\ns_add_u32 s33, s34, 4096")
        e(f"v_lshrrev_b32 v3, 5, v1\nv_mul_u32_u24 v3, 7168, v3\nv_and_b32 v9, 31, v1\nv_min_u32 v13, 23, v9\nv_lshl_add_u32 v13, v13, 7, v3\nv_lshl_add_u32 v3, v9, 7, v3\nbuffer_load_dword v100, v3, s[12:15], s34 offen {SC}")
    ks_main(k,28,38,120,'v',17,lambda s: 128+8*s if s<16 else 8*(s-16))
    st(k,'p5red')
    R=BFR
    for j in range(8):
        unpack(k,14,X+j)
        e(f"v_fma_f32 v14, v{R+2*j}, v{GB+2*j}, v14\nv_fma_f32 v15, v{R+2*j+1}, v{GB+2*j+1}, v15\nv_cvt_pk_bf16_f32 v{16+j}, v14, v15")
    e("s_lshl_b32 s28, s22, 15\ns_lshl_b32 s29, s23, 6\ns_add_u32 s28, s28, s29")
    e("v_permlane32_swap_b32 v16, v18\nv_permlane32_swap_b32 v17, v19\nv_permlane32_swap_b32 v20, v22\nv_permlane32_swap_b32 v21, v23")
    e("buffer_store_dwordx4 v[16:19], v10, s[24:27], s28 offen\nbuffer_store_dwordx4 v[20:23], v10, s[24:27], s28 offen offset:32")
```

```python
from pk2 import *
F4I=int(os.environ.get('F4I','58'))
def p4(k,BUD=int(os.environ.get('BUD','32')),APRE=int(os.environ.get('APRE','20')),MI=8,CK=int(os.environ.get('CK','25'))):
    e=k.e; T=Trk(k)
    CSL=155648
    slot=lambda j: (131072+j*12288) if j<2 else (j-2)*16384
    ACC=128; BF=[32,48,96]; STT=64
    e("s_and_b32 s27, s4, 1\ns_lshr_b32 s16, s5, 1\ns_lshl_b32 s16, s16, 2\ns_add_u32 s16, s16, s4")
    e(f"s_lshl_b32 s17, s16, 15\ns_add_u32 s17, s17, {WS_Y2}\ns_mul_i32 s31, s4, 3072\ns_add_u32 s30, s41, s31\ns_add_u32 s30, s30, 131072")
    def st2(j):
        return [((f"s_add_u32 m0, s31, {slot(j)}\ns_nop 0\n" if i==0 else "")+f"buffer_load_dwordx4 v2, s[12:15], s30 offen offset:{i*1024} {SC} lds"+(f"\ns_add_u32 s30, s30, 12288" if i==2 else ""),'vm',('s2',j)) for i in range(3)]
    def run(it):
        if isinstance(it,str): e(it)
        elif it[1]=='w': T.wait(it[0],it[2])
        else: T.op(it[1],it[0],it[2])
    for it in st2(0)+st2(1): run(it)
    e(f"s_mul_i32 s20, s40, 3584\ns_add_u32 s20, s20, {WS_CF}\nv_and_b32 v17, 31, v1\nv_lshlrev_b32 v17, 4, v17")
    e(f"s_lshl_b32 s21, s16, 12\ns_add_u32 s21, s21, {WS_ST}\nv_lshlrev_b32 v4, 3, v1")
    csd=[(f"buffer_load_dwordx4 {vr(68+4*b,4)}, v17, s[12:15], s20 offen offset:{b*512} {SC}",'vm','cs') for b in range(7)]; misc=[]
    misc+=[(f"buffer_load_dwordx2 {vr(STT+2*i,2)}, v4, s[12:15], s21 offen offset:{i*512} {SC}",'vm','st') for i in range(8)]
    VQ=[]
    for s in range(32):
        if s==MI: VQ+=misc
        VQ.append((f"buffer_load_dwordx4 {vr(4*s,4,'a')}, v2, s[12:15], s17 offen offset:{(s&3)*1024} {SC}"+("\ns_add_u32 s17, s17, 4096" if s&3==3 else ""),'vm',('a',s)))
    fcl=((f"s_mov_b32 s98, {WS_FL+FC*2048}\nbuffer_load_dwordx2 v[14:15], v13, s[12:15], s98 offen {SC}",'vm','fc'))
    for j in range(2,8): VQ+=st2(j)
    for s in range(NWD,16): VQ+=[(x,'vm','wd') for x in ld5(128+8*s,'a',36,s)]
    for s in range(16,28): VQ+=[(x,'vm',('w2',2*(s-16)+2)) for x in ld5(8*(s-16),'a',36,s)]
    e(f"v_add_u32 v8, 65536, v2")
    e(f"s_mul_i32 s33, s16, {112*1024}\ns_mul_i32 s34, s40, 7168\ns_add_u32 s33, s33, s34\ns_add_u32 s33, s33, {WS_HH}\ns_add_u32 s34, s33, 4096")
    e("v_and_b32 v12, 15, v1\nv_lshlrev_b32 v12, 3, v12\ns_lshr_b32 s28, s5, 1\ns_lshl_b32 s28, s28, 7\nv_add_u32 v12, s28, v12")
    st(k,'p4pre')
    e("v_and_b32 v13, 3, v1\ns_mul_i32 s28, s40, 7\ns_lshr_b32 s28, s28, 1\nv_add_u32 v13, s28, v13\nv_bfe_u32 v15, v1, 4, 1\nv_mul_u32_u24 v15, 56, v15\nv_add3_u32 v13, v13, v15, 56\nv_add_u32 v13, 56, v13\nv_lshlrev_b32 v13, 3, v13")
    e("s_xor_b32 s28, s4, 3\ns_or_b32 s28, s28, s2\ns_cmp_lg_u32 s28, 0\ns_cbranch_scc1 NCE"); poll(k,allflags(F1))
    e(f"v_mov_b32 v240, s96\nv_mov_b32 v241, s97\nv_mov_b32 v242, 0\ns_mov_b32 s28, {WS_NONCE}\nbuffer_store_dwordx2 v[240:241], v242, s[12:15], s28 offen\nNCE:")
    poll(k,[(12,WS_FL+F3*2048,0)],one=True); flag(k,FC,'s2'); T.done['vm']=len(T.q['vm'])
    st(k,'f3ok')
    e('s_lshr_b32 s29, s5, 1')
    touch(k,16,WS_Y2,'s29',131072,'s_and_b32 s98, s5, 1\ns_lshl_b32 s98, s98, 2\ns_and_b32 s99, s6, 3\ns_add_u32 s98, s98, s99',16384,4096,32)
    e("v_and_b32 v12, 15, v1\nv_lshlrev_b32 v12, 3, v12\ns_lshr_b32 s28, s3, 1\ns_lshl_b32 s28, s28, 7\nv_add_u32 v12, s28, v12")
    for _ in range(APRE): run(VQ.pop(0))
    MU,SG,AA=18,19,20
    stats=[('vm','w','st')]
    for i in range(1,8): stats+=[f"v_add_f32 v{STT}, v{STT}, v{STT+2*i}",f"v_add_f32 v{STT+1}, v{STT+1}, v{STT+2*i+1}"]
    stats+=[f"v_mov_b32 v{STT+2}, v{STT}",f"v_mov_b32 v{STT+3}, v{STT+1}","s_nop 1",f"v_permlane32_swap_b32 v{STT}, v{STT+2}",f"v_permlane32_swap_b32 v{STT+1}, v{STT+3}",
        f"v_add_f32 v{STT}, v{STT}, v{STT+2}",f"v_add_f32 v{STT+1}, v{STT+1}, v{STT+3}",
        f"v_mul_f32 v{MU}, {f2u(1/512)}, v{STT}",f"v_mul_f32 v{STT+1}, {f2u(1/512)}, v{STT+1}",f"v_fma_f32 v{STT+1}, -v{MU}, v{MU}, v{STT+1}",f"v_max_f32 v{STT+1}, 0, v{STT+1}",
        f"v_add_f32 v{STT+1}, {f2u(1e-5)}, v{STT+1}",f"v_rsq_f32 v{AA}, v{STT+1}","s_nop 0",f"v_mul_f32 v{SG}, v{AA}, v{STT+1}",f"v_mul_f32 v{AA}, {f2u(-1.4426950408889634)}, v{AA}"]
    stats+=[f"v_sub_f32 v{MU}, 0, v{MU}","v_cmp_gt_u32 vcc, 32, v1"]
    for d,x in ((24,SG),(26,MU)):
        stats+=[f"v_cvt_pk_bf16_f32 v{d+1}, v{x}, 0",f"v_lshlrev_b32 v21, 16, v{d+1}",f"v_sub_f32 v21, v{x}, v21",f"v_cvt_pk_bf16_f32 v{d}, v{x}, v21",f"v_cndmask_b32 v{d}, 0, v{d}, vcc",f"v_cndmask_b32 v{d+1}, 0, v{d+1}, vcc"]
    def epi(b,cr=0,nxt=None):
        L=[]; D=ACC+16*b
        L+=[f"v_mul_f32 v{D+r}, v{D+r}, v{AA}" for r in range(8)]
        L+=[f"v_exp_f32 v{D+r}, v{D+r}" for r in range(8)]
        L+=[f"v_fma_f32 v{D+r}, v{D+r}, v{SG}, v{SG}" for r in range(8)]
        L+=[f"v_rcp_f32 v{D+r}, v{D+r}" for r in range(8)]
        L+=[f"v_mul_f32 v{D+r}, v{D+r}, v{D+8+r}" for r in range(8)]
        L+=[f"v_cvt_pk_bf16_f32 v{D+8+j}, v{D+2*j}, v{D+2*j+1}" for j in range(4)]
        L+=[(f"buffer_store_dwordx4 {vr(D+8,4)}, v2, s[12:15], s{33+b//4} offen offset:{(b&3)*1024} {SC}",'vm','o')]
        return L
    cost=lambda it: (8 if isinstance(it,str) and (it.startswith('v_exp') or it.startswith('v_rcp')) else 4) if isinstance(it,str) or it[1]!='vm' else 8
    def reads(p,s):
        L=[]; b0=BF[(s+32*p)%3]
        if p==0:
            for b in range(4): L.append((f"ds_read_b128 {vr(b0+4*b,4)}, v{2 if s<16 else 8} offset:{(s*4096+b*1024)&65535}",'lg',('b',p,s,b)))
        else:
            if s&3==0: L.append(f"v_add_u32 v16, {slot(s>>2)}, v2")
            for b in range(3): L.append((f"ds_read_b128 {vr(b0+4*b,4)}, v16 offset:{(s&3)*3072+b*1024}",'lg',('b',p,s,b)))
        return L
    for it in reads(0,0)+reads(0,1): run(it)
    steps=[(0,s) for s in range(32)]+[(1,s) for s in range(32)]
    fill=[]; nm=0
    for idx,(p,s) in enumerate(steps):
        nb=4 if p==0 else 3
        if p==0 and s==MI+3: fill+=stats
        if p==0 and s==CK-6: run(fcl)
        if p==0 and s==CK:
            while any(x[2]=='fc' for x in VQ): run(VQ.pop(0))
            T.wait('vm','fc'); e("v_cmp_ne_u64 vcc, s[96:97], v[14:15]\ns_cmp_eq_u64 vcc, 0\ns_cbranch_scc1 FCOK"); poll(k,[(13,WS_FL+FC*2048,0)]); e("FCOK:"); assert not fill
            for x in csd: run(x)
        if p==1 and s==0:
            T.wait('vm','cs')
            for b in range(7): e(f"v_mfma_f32_32x32x16_bf16 {vr(ACC+16*b,16)}, {vr(68+4*b,4)}, v[24:27], {vr(ACC+16*b,16) if b<4 else '0'}")
        if p==1 and s==1: fill+=epi(0,1,1)+epi(1,1,2)+epi(2,1,3)+epi(3,1)
        rd=[]
        if idx+2<64:
            p2,s2=steps[idx+2]
            if s2&3==0:
                if p2==1:
                    tg=('s2',s2>>2)
                    while any(x[2]==tg for x in VQ): run(VQ.pop(0))
                    T.wait('vm',tg)
                if idx==F4I: assert not fill; T.wait('vm','o')
                e("s_barrier")
                if idx==F4I: flag(k,F4A,'s7')
            rd=reads(p2,s2)
        if p==0:
            while any(x[2]==('a',s) for x in VQ): run(VQ.pop(0))
            T.wait('vm',('a',s))
        if idx in (0,16,32,48): st(k,f'p4_{idx}')
        for b in range(nb):
            if b==0: T.wait('lg',('b',p,s,nb-1))
            d=vr(ACC+16*(b+4*p),16)
            e(f"v_mfma_f32_32x32x16_bf16 {d}, {vr(BF[idx%3]+4*b,4)}, {vr(4*s,4,'a')}, {'0' if (s==0 and p==0) else d}")
            bud=BUD; nm+=1; n=0
            while rd and (n<1 or b==nb-1 or isinstance(rd[0],str)):
                it=rd.pop(0); run(it); bud-=8; n+=0 if isinstance(it,str) else 1
            if VQ and nm%2==0:
                for qi,q in enumerate(VQ):
                    tg=q[2]
                    if isinstance(tg,tuple) and tg[0]=='s2' and p==0 and (s>>2)<tg[1]: continue
                    if isinstance(tg,tuple) and tg[0]=='w2' and not (p==1 and s>=tg[1]): continue
                    run(VQ.pop(qi)); bud-=8; break
            while fill and bud>=cost(fill[0]):
                it=fill.pop(0); run(it); bud-=cost(it)
    for it in VQ: run(it)
    st(k,'p4mm')
    for it in fill: run(it)
    e("s_nop 11")
    for b in range(4,7):
        for it in epi(b,0): run(it)
    st(k,'p4end')
    e(f"s_mov_b32 s98, {WS_FL+F4A*2048}\nbuffer_load_dwordx2 v[14:15], v12, s[12:15], s98 offen {SC}")
    publish(k,F4)
def main():
    k=Kern(NAME+"_kernel",256,256,163840,256,256); e=k.e
    e("s_cmp_ge_u32 s2, 256\ns_cbranch_scc1 PK_END")
    stamp(k,14,True); stamp(k,0)
    def ja(T): job_issue(k,'A',JB); T.log('vm','j',4)
    p1(k,ja)
    p2(k,lambda T: b_issue(k,T),lambda: p3_pref(k))
    p3(k); p4(k); p5(k)
    if os.environ.get('DBGOUT'):
        e("s_or_b32 s28, s2, s4\ns_cmp_lg_u32 s28, 0x45\ns_cbranch_scc1 PK_END"); k.srds([('dbg',24)])
        e("s_waitcnt vmcnt(0)\ns_memrealtime s[94:95]\ns_waitcnt lgkmcnt(0)\nv_mov_b32 v0, 0\ns_sub_u32 s94, s94, s92")
        for i in range(1,16):
            if i<14: e(f"s_sub_u32 s{64+2*i}, s{64+2*i}, s64")
            e(f"v_mov_b32 v1, s{64+2*i}\nbuffer_store_dword v1, v0, s[24:27], 0 offen offset:{4*i}")
    else: stamp_out(k,0)
    e("PK_END:\ns_endpgm")
    p2_cold(k)
    return k
if __name__=='__main__':
    import sys
    k=main()
    s=build([k]).replace(f"; @launch kernel={k.name} grid","; @launch grid").replace("next_free_sgpr 96","next_free_sgpr 102")
    open(sys.argv[1] if len(sys.argv)>1 else f"cdna_kernels/{NAME}.s","w").write(s)
```
